```python
import torch

def _softmax(x, axis=-1):
    return torch.softmax(x, dim=axis)
def _gelu(x):
    return torch.nn.functional.gelu(x, approximate="tanh")
def _silu(x):
    return torch.nn.functional.silu(x)
def _sigmoid(x):
    return torch.sigmoid(x)
def _layernorm(x, axis=-1, eps=1e-5):
    m = x.mean(dim=axis, keepdim=True)
    v = x.var(dim=axis, keepdim=True, unbiased=False)
    return (x - m) / torch.sqrt(v + eps)
def _scatter_add(tgt, idx, src, axis=0):
    return tgt.clone().index_add_(axis, idx, src)
def _segment_sum(src, seg, n):
    out = torch.zeros((n,) + src.shape[1:], dtype=src.dtype)
    return out.index_add_(0, seg, src)
def _pad(x, pw):
    flat = tuple(v for pair in reversed(pw) for v in pair)
    return torch.nn.functional.pad(x, flat)

kernel_name = 'sequential_preLN__mha_block__geglu_ffn__prompt'

def setup_inputs():

    _w = (lambda a: (lambda t: t.to(torch.bfloat16) if t.is_floating_point() else t)(torch.as_tensor(a)))
    def _A_setup():
        B, S, D, H = 1, 2048, 576, 32
        return {
            "x": _w((lambda *s: torch.randn(*s, dtype=torch.bfloat16) * 0.05)(B, S, D)),
            "wqkv": _w((lambda *s: torch.randn(*s, dtype=torch.bfloat16) * 0.05)(D, 3 * D)),
            "wo": _w((lambda *s: torch.randn(*s, dtype=torch.bfloat16) * 0.05)(D, D)),
        }
    _A_in = _A_setup()

    def _B_setup():
        B, S, D, F = 1, 2048, 576, 4608
        return {
            "x": _w((lambda *s: torch.randn(*s, dtype=torch.bfloat16) * 0.05)(B, S, D)),
            "w_gate": _w((lambda *s: torch.randn(*s, dtype=torch.bfloat16) * 0.05)(D, F)),
            "w_up": _w((lambda *s: torch.randn(*s, dtype=torch.bfloat16) * 0.05)(D, F)),
            "w_down": _w((lambda *s: torch.randn(*s, dtype=torch.bfloat16) * 0.05)(F, D)),
        }
    _B_in = _B_setup()

    return {
        "A_x": _A_in["x"],
        "A_wqkv": _A_in["wqkv"],
        "A_wo": _A_in["wo"],
        "B_x": _B_in["x"],
        "B_w_gate": _B_in["w_gate"],
        "B_w_up": _B_in["w_up"],
        "B_w_down": _B_in["w_down"],
    }

def reference(A_x, A_wqkv, A_wo, B_x, B_w_gate, B_w_up, B_w_down):
    def _A_ref(x, wqkv, wo):
        B, S, D = x.shape
        H = 32
        Dh = D // H
        qkv = (lambda x, *d: x.permute(*d))((x @ wqkv).reshape(B, S, 3, H, Dh), 2, 0, 3, 1, 4)
        q, k, v = qkv[0], qkv[1], qkv[2]
        scores = torch.einsum("bhqd,bhkd->bhqk", q, k) * (Dh ** -0.5)
        p = _softmax(scores, axis=-1)
        o = torch.einsum("bhqk,bhkd->bhqd", p, v)
        return (lambda x, *d: x.permute(*d))(o, 0, 2, 1, 3).reshape(B, S, D) @ wo

    def _B_ref(x, w_gate, w_up, w_down):
        return (_gelu(x @ w_gate) * (x @ w_up)) @ w_down

    x = A_x
    h = x + _A_ref(_layernorm(x, axis=-1), A_wqkv, A_wo)
    h2 = h + _B_ref(_layernorm(h, axis=-1), B_w_gate, B_w_up, B_w_down)
    return h2
```

```python
import re

TRANS = ("v_exp_f32", "v_log_f32", "v_rcp_f32", "v_rsq_f32", "v_sqrt_f32", "v_sin_f32", "v_cos_f32",
         "v_exp_f16", "v_rcp_f16", "v_rcp_iflag_f32")

def regs_of(tok):
    tok = tok.strip()
    neg = tok.lstrip("-")
    m = re.fullmatch(r"\|?(?:abs\()?([vas])(\d+)\)?\|?", neg)
    if m: return [(m.group(1), int(m.group(2)))]
    m = re.fullmatch(r"([vas])\[(\d+):(\d+)\]", neg)
    if m: return [(m.group(1), i) for i in range(int(m.group(2)), int(m.group(3)) + 1)]
    if neg == "vcc": return [("s", 106), ("s", 107)]
    if neg == "vcc_lo": return [("s", 106)]
    if neg == "vcc_hi": return [("s", 107)]
    if neg == "exec": return [("s", 126), ("s", 127)]
    if neg == "m0": return [("s", 124)]
    return []

class Ins:
    __slots__ = ("text", "op", "kind", "wr", "rd", "passes", "srcC", "srcAB", "states", "dpp", "store_data", "lds_dma", "is_trans", "sdwa", "dotAB")
    def __init__(self, text):
        self.text = text
        t = text.split(";")[0].strip()
        parts = t.split(None, 1)
        self.op = op = parts[0]
        rest = parts[1] if len(parts) > 1 else ""
        ops = []; cur = ""; depth = 0
        for ch in rest:
            if ch == "[": depth += 1
            if ch == "]": depth -= 1
            if ch == "," and depth == 0: ops.append(cur.strip()); cur = ""
            else: cur += ch
        if cur.strip(): ops.append(cur.strip())
        mods = ""
        if ops:
            sp = ops[-1].split(None, 1)
            ops[-1] = sp[0]
            if len(sp) > 1: mods = sp[1]
        self.wr = set(); self.rd = set(); self.passes = 0; self.srcC = set(); self.srcAB = set()
        self.states = 1; self.dpp = False; self.store_data = set(); self.lds_dma = False
        self.is_trans = False; self.sdwa = "sdwa" in op or "op_sel" in mods
        R = [regs_of(o) for o in ops]
        self.dotAB = (set(R[1]) | set(R[2])) if op.startswith("v_dot") else set()
        if op == "s_nop":
            self.kind = "nop"; self.states = int(ops[0], 0) + 1
        elif op.startswith("v_mfma"):
            self.kind = "mfma"
            self.wr = set(R[0]); self.srcAB = set(R[1]) | set(R[2]); self.srcC = set(R[3]); self.rd = self.srcAB | self.srcC
            self.passes = 8 if "32x32x16" in op else 4 if "16x16x32" in op else 2 if "4x4x4" in op else 16
        elif op.startswith("v_"):
            self.kind = "valu"
            self.dpp = "_dpp" in op or "row_" in mods or "quad_perm" in mods
            self.is_trans = any(op.startswith(x) for x in TRANS)
            if op.startswith("v_permlane"):
                self.wr = set(R[0]) | set(R[1]); self.rd = set(self.wr)
            elif op.startswith("v_cmp"):
                self.wr = set(R[0]);
                for r in R[1:]: self.rd |= set(r)
                if op.startswith("v_cmpx"): self.wr |= set(regs_of("exec"))
            elif op.startswith(("v_add_co", "v_sub_co", "v_addc_co", "v_subb_co", "v_subrev_co", "v_mad_u64")):
                self.wr = set(R[0]) | set(R[1])
                for r in R[2:]: self.rd |= set(r)
            else:
                self.wr = set(R[0])
                for r in R[1:]: self.rd |= set(r)
                if op.startswith(("v_fmac", "v_dot2c", "v_pk_fmac", "v_writelane")) or "UNUSED_PRESERVE" in mods or self.dpp:
                    self.rd |= set(R[0])
                if op.startswith("v_cndmask") and len(ops) == 3: self.rd |= set(regs_of("vcc"))
        elif op.startswith("ds_"):
            self.kind = "ds"
            if op.startswith(("ds_read", "ds_bpermute", "ds_permute", "ds_swizzle")) or "_rtn" in op:
                self.wr = set(R[0])
                for r in R[1:]: self.rd |= set(r)
            else:
                for r in R: self.rd |= set(r)
        elif op.startswith(("buffer_", "global_")):
            self.kind = "vmem"
            lds = " lds" in (" " + mods) or "_lds_" in op
            self.lds_dma = lds
            if lds:
                for r in R: self.rd |= set(r)
                self.rd |= set(regs_of("m0"))
            elif "load" in op:
                self.wr = set(R[0])
                for r in R[1:]: self.rd |= set(r)
            elif "atomic" in op and "sc0" in mods and op.startswith("global"):
                self.wr = set(R[0])
                for r in R[1:]: self.rd |= set(r)
            else:
                for r in R: self.rd |= set(r)
                if "atomic" in op and "sc0" in mods: self.wr = set(R[0])
                if op.startswith("buffer_store") and ("x4" in op or "x3" in op): self.store_data = set(R[0])
                if op.startswith("global_store") and ("x4" in op or "x3" in op): self.store_data = set(R[1])
        elif op.startswith("s_"):
            self.kind = "salu"
            if op.startswith(("s_cmp", "s_cbranch", "s_branch", "s_waitcnt", "s_barrier", "s_setprio", "s_sleep", "s_endpgm", "s_bitcmp")):
                for r in R: self.rd |= set(r)
            else:
                if R: self.wr = set(R[0])
                for r in R[1:]: self.rd |= set(r)
                if "saveexec" in op: self.wr |= set(regs_of("exec"))
        else:
            self.kind = "other"

XDL_D_VALU = {2: 5, 4: 8, 8: 12, 16: 20}
XDL_D_AB = {2: 5, 4: 8, 8: 12, 16: 20}
XDL_D_C_OVERLAP = {2: 4, 4: 6, 8: 10, 16: 18}
XDL_C_WAR = {2: 1, 4: 3, 8: 7, 16: 15}

def need(p, c):
    n = 0
    vw = {r for r in p.wr if r[0] in "va"}
    sw = {r for r in p.wr if r[0] == "s"}
    if p.kind == "valu" and p.op.startswith("v_dot"):
        if c.op != p.op:
            if vw & (c.rd | c.wr): n = max(n, 3)
        elif vw & c.dotAB: n = max(n, 3)
    if p.kind == "valu":
        if c.kind == "mfma" and vw & c.rd: n = max(n, 2)
        if c.kind == "valu":
            if c.dpp and vw & c.rd: n = max(n, 2)
            if c.op.startswith("v_permlane") and vw & c.rd: n = max(n, 2)
            if c.op.startswith(("v_readlane", "v_readfirstlane")) and vw & c.rd: n = max(n, 1)
            if p.is_trans and not c.is_trans and vw & c.rd: n = max(n, 1)
            if p.sdwa and vw & (c.rd | c.wr): n = max(n, 1)
            if sw & c.rd: n = max(n, 4 if c.op.startswith(("v_readlane", "v_writelane")) else 2)
            if (("s", 126) in sw) and (c.dpp): n = max(n, 5)
            if (("s", 126) in sw) and c.op.startswith(("v_readlane", "v_readfirstlane", "v_writelane", "v_permlane")): n = max(n, 4)
        if c.kind == "mfma" and ("s", 126) in sw: n = max(n, 4)
        if c.kind == "vmem" and sw & c.rd: n = max(n, 5)
        if c.kind == "salu" and sw & c.rd: n = max(n, 1)
    if p.kind == "mfma":
        if c.kind == "mfma":
            if p.wr & c.srcAB: n = max(n, XDL_D_AB[p.passes])
            if p.wr & c.srcC:
                if p.wr == c.srcC and p.passes == c.passes: n = max(n, 2 if p.passes == 2 else 0)
                else: n = max(n, XDL_D_C_OVERLAP[p.passes])
            elif p.wr & c.wr: n = max(n, XDL_D_C_OVERLAP[p.passes])
        elif c.kind in ("valu", "vmem", "ds"):
            if p.wr & (c.rd | c.wr): n = max(n, XDL_D_VALU[p.passes])
            if c.kind == "valu" and p.srcC & c.wr: n = max(n, XDL_C_WAR[p.passes])
    if p.kind == "vmem" and p.store_data:
        if c.kind == "valu" and p.store_data & c.wr: n = max(n, 2)
        elif c.kind in ("mfma", "ds", "vmem") and p.store_data & c.wr: n = max(n, 1)
    if p.kind == "salu" and ("s", 124) in p.wr and c.lds_dma: n = max(n, 1)
    return n

class Asm:
    store_mod = ""
    def __init__(self):
        self.out = []
        self.hist = []
        self.nops = 0
        self.count = 0
    def raw(self, s):
        self.out.append(s)
    def label(self, l):
        self.out.append(f"{l}:")
    def __call__(self, text):
        for line in text.strip().split("\n"):
            line = line.strip()
            if not line or line.startswith(";"):
                continue
            if line.endswith(":"):
                self.label(line[:-1]); continue
            if Asm.store_mod and line.startswith("buffer_store") and "s96" not in line and " sc" not in line:
                line = line + " " + Asm.store_mod
            c = Ins(line)
            dist = 0; req = 0
            for p in reversed(self.hist[-24:]):
                n = need(p, c)
                if n > dist: req = max(req, n - dist)
                dist += p.states
                if dist >= 20: break
            while req > 0:
                k = min(req, 16)
                nop = Ins(f"s_nop {k-1}")
                self.hist.append(nop); self.out.append(f"    s_nop {k-1}"); self.nops += 1
                req -= k
            self.hist.append(c); self.out.append("    " + line); self.count += 1
            if len(self.hist) > 64: self.hist = self.hist[-32:]
    def flush(self, n=20):
        self(f"s_nop 15\ns_nop {n-17}" if n > 16 else f"s_nop {n-1}")
    def text(self):
        return "\n".join(self.out) + "\n"

def desc(name, vgpr, sgpr=102, accum=None):
    if accum is None: accum = (vgpr + 3) // 4 * 4
    return f""".p2align 6
.amdhsa_kernel {name}
  .amdhsa_next_free_vgpr {vgpr}
  .amdhsa_next_free_sgpr {sgpr}
  .amdhsa_accum_offset {accum}
  .amdhsa_group_segment_fixed_size 0
  .amdhsa_kernarg_size 80
  .amdhsa_user_sgpr_count 2
  .amdhsa_user_sgpr_kernarg_segment_ptr 1
  .amdhsa_system_sgpr_workgroup_id_x 1
.end_amdhsa_kernel
"""

def vr(b, n): return f"v[{b}:{b+n-1}]" if n > 1 else f"v{b}"
def ar(b, n): return f"a[{b}:{b+n-1}]" if n > 1 else f"a{b}"
def sr(b, n): return f"s[{b}:{b+n-1}]" if n > 1 else f"s{b}"
def f32(x):
    import struct
    return "0x%08x" % struct.unpack("<I", struct.pack("<f", x))[0]

PROF_BASE = 0x3800000
class Prof:
    enabled = False
    def __init__(self, a, kidx): self.a = a; self.k = kidx; self.n = 0
    def start(self):
        if not Prof.enabled: return
        self.a("s_memrealtime s[64:65]\ns_memtime s[66:67]"); self.n = 2
    def stamp(self, i):
        if not Prof.enabled: return
        self.a(f"s_memtime s[{64+2*i}:{65+2*i}]"); self.n = max(self.n, i + 1)
    def dump(self, srd, swave, vt, drain=True):
        if not Prof.enabled: return
        a = self.a
        if drain: a("s_waitcnt vmcnt(0)")
        a(f"s_memtime s[92:93]\ns_memrealtime s[94:95]\ns_waitcnt lgkmcnt(0)")
        a(f"s_lshl_b32 s96, s2, 4\ns_add_u32 s96, s96, s{swave}\ns_lshl_b32 s96, s96, 7\ns_add_u32 s96, s96, {PROF_BASE + self.k * 0x100000}")
        a(f"s_mov_b64 exec, 1\nv_mov_b32 v{vt+2}, 0")
        for i in range(16):
            a(f"v_mov_b32 v{vt}, s{64+2*i}\nv_mov_b32 v{vt+1}, s{65+2*i}\nbuffer_store_dwordx2 v[{vt}:{vt+1}], v{vt+2}, s[{srd}:{srd+3}], s96 offen offset:{8*i}")
```

```python
from asmlib import *
from layout import *

K1_NAUX = 9
K1_GRID = 192 + K1_NAUX
K1_SLOT = 27648
K1_CS_PART = 5 * K1_SLOT
K1_CS = K1_CS_PART + 4 * 576
K1_ST = K1_CS + 576
K1_LDS = K1_ST + 1024

def srd(a, d, lo, size):
    a(f"s_mov_b32 s{d}, s{lo}\ns_mov_b32 s{d+1}, s{lo+1}\ns_mov_b32 s{d+2}, {size}\ns_mov_b32 s{d+3}, 0x00020000")

def red_rows_add(a, v, t):
    a(f"v_mov_b32 v{t}, v{v}\nv_permlane32_swap_b32 v{v}, v{t}\nv_add_f32 v{v}, v{v}, v{t}")
    a(f"v_mov_b32 v{t}, v{v}\nv_permlane16_swap_b32 v{v}, v{t}\nv_add_f32 v{v}, v{v}, v{t}")

def gen_k1(a, name):
    X0 = 100
    X = lambda b, s: X0 + (s * 2 + b) * 4
    ACC0 = 28
    ACC = lambda j, b: ACC0 + (j * 2 + b) * 4
    VD = 4
    VX = 11
    VA = 13
    VZ = 16
    SUM = 19; SSQv = 21
    T0 = 23; T1 = 24; T2 = 25; T3 = 26; LANE = 27
    VT = 1; VG = 2
    TMP = 244
    WF = lambda buf, j: (buf * 9 + j) * 4
    CSA = lambda j: 72 + j * 4
    ONES = 108
    sX, sW, sWS = 8, 12, 16
    sWave, sMB, sNB, sT = 20, 21, 22, 23
    sONE = 24
    a.raw(f".p2align 8\n{name}:")
    pf = Prof(a, 0)
    a(f"""
    s_cmp_ge_u32 s2, {K1_GRID}
    s_cbranch_scc1 {name}_end
    """)
    pf.start()
    a(f"""
    s_load_dwordx4 s[4:7], s[0:1], 0
    s_load_dwordx2 s[28:29], s[0:1], 16
    s_load_dwordx2 s[30:31], s[0:1], 72
    v_lshrrev_b32 v{T0}, 6, v0
    v_and_b32 v{LANE}, 63, v0
    v_readfirstlane_b32 s{sWave}, v{T0}
    v_and_b32 v{VT}, 15, v0
    v_bfe_u32 v{VG}, v0, 4, 2
    s_mov_b32 s{sONE}, 0x3f803f80
    s_waitcnt lgkmcnt(0)
    """)
    srd(a, sX, 4, X_BYTES)
    srd(a, sW, 6, D * 3 * D * 2)
    srd(a, sWS, 30, WS_BYTES)
    a(f"""
    s_cmp_ge_u32 s2, 192
    s_cbranch_scc1 {name}_aux
    s_and_b32 s25, s2, 7
    s_lshr_b32 s26, s2, 3
    s_lshr_b32 s{sMB}, s25, 1
    s_lshl_b32 s{sMB}, s{sMB}, 2
    s_and_b32 s27, s26, 3
    s_add_u32 s{sMB}, s{sMB}, s27
    s_and_b32 s{sNB}, s25, 1
    s_mul_i32 s{sNB}, s{sNB}, 6
    s_lshr_b32 s27, s26, 2
    s_add_u32 s{sNB}, s{sNB}, s27
    s_lshl_b32 s{sT}, s{sMB}, 2
    s_add_u32 s{sT}, s{sT}, s{sWave}
    """)
    for jj in range(7):
        a(f"""
        v_add_u32 v{T0}, {256*jj}, v0
        v_mul_u32_u24 v{T1}, 3641, v{T0}
        v_lshrrev_b32 v{T1}, 16, v{T1}
        v_mul_u32_u24 v{T2}, 18, v{T1}
        v_sub_u32 v{T2}, v{T0}, v{T2}
        v_and_b32 v{T0}, 0x63, v{T1}
        v_bfe_u32 v{T3}, v{T1}, 2, 2
        v_lshl_or_b32 v{T0}, v{T3}, 3, v{T0}
        v_bfe_u32 v{T3}, v{T1}, 4, 1
        v_lshl_or_b32 v{T0}, v{T3}, 2, v{T0}
        v_mul_u32_u24 v{T0}, {3*D*2}, v{T0}
        v_lshl_add_u32 v{VD+jj}, v{T2}, 4, v{T0}
        """)
    a(f"""
    s_lshl_b32 s25, s{sT}, 5
    v_add_u32 v{T0}, s25, v{VT}
    v_mul_u32_u24 v{T0}, {D*2}, v{T0}
    v_lshl_add_u32 v{VX}, v{VG}, 4, v{T0}
    v_add_u32 v{VX+1}, {16*D*2}, v{VX}
    s_mul_i32 s26, s{sNB}, 288
    s_lshl_b32 s27, s{sWave}, 10
    """)
    def dma_stage(st):
        slot = st % 5
        a(f"s_add_u32 s25, s26, {st*96*3*D*2}")
        for jj in range(7):
            if jj == 6:
                a(f"s_cmp_eq_u32 s{sWave}, 3\ns_cbranch_scc1 {name}_skip{st}")
            a(f"s_add_u32 m0, s27, {slot*K1_SLOT + jj*4096}")
            a(f"buffer_load_dwordx4 v{VD+jj}, s[{sW}:{sW+3}], s25 offen lds")
            if jj == 6: a.label(f"{name}_skip{st}")
    def x_stage(st):
        for s in range(3 * st, 3 * st + 3):
            for b in range(2):
                a(f"buffer_load_dwordx4 {vr(X(b,s),4)}, v{VX+b}, s[{sX}:{sX+3}], 0 offen offset:{s*64}")
    for st in range(5):
        dma_stage(st); x_stage(st)
    x_stage(5)
    pf.stamp(2)
    for i in range(72): a(f"v_mov_b32 v{ACC0+i}, 0")
    for i in range(36): a(f"v_accvgpr_write_b32 a{72+i}, 0")
    a(f"v_mov_b32 v{T0}, s{sONE}")
    for i in range(4): a(f"v_accvgpr_write_b32 a{ONES+i}, v{T0}")
    for i in range(4): a(f"v_mov_b32 v{SUM+i}, 0")
    a(f"""
    v_lshrrev_b32 v{T0}, 2, v{LANE}
    v_mul_u32_u24 v{T0}, 288, v{T0}
    v_and_b32 v{T1}, 3, v{LANE}
    s_cmp_ge_u32 s{sNB}, 8
    s_cbranch_scc1 {name}_vpath
    """)

    def main_loop(vpath):
        tag = "v" if vpath else "qk"
        def reads(s):
            slot = (s // 3) % 5
            base = slot // 2
            off0 = (slot % 2) * K1_SLOT + (s % 3) * 9216
            lst = []
            for j in range(9):
                for hb in range(2):
                    if vpath: reg, off = VA + base, off0 + 32 * j
                    elif j < 8: reg, off = VA + base, off0 + 72 * (j // 2) + 8 * (j % 2)
                    else: reg, off = VZ + base, off0
                    lst.append(f"ds_read_b64_tr_b16 {ar(WF(s%2,j)+2*hb,2)}, v{reg} offset:{off + hb*4608}")
            return lst
        waits = {0: 54, 1: 42, 2: 30, 3: 24, 4: 12, 5: 0}
        a(f"s_waitcnt vmcnt({waits[0]})\ns_barrier")
        pf.stamp(3)
        for r in reads(0): a(r)
        for s in range(18):
            if s % 3 == 2 and s < 17:
                st = s // 3 + 1
                a(f"s_waitcnt vmcnt({waits[st]}) lgkmcnt(0)\ns_barrier")
                pf.stamp(3 + st)
                if st == 2: dma_stage_tag(5, tag)
            else:
                a("s_waitcnt lgkmcnt(0)")
            nxt = reads(s + 1) if s < 17 else []
            dots = []
            for b in range(2):
                for i in range(4):
                    dots.append(f"v_dot2_f32_bf16 v{SUM+b}, v{X(b,s)+i}, s{sONE}, v{SUM+b}")
                    dots.append(f"v_dot2_f32_bf16 v{SSQv+b}, v{X(b,s)+i}, v{X(b,s)+i}, v{SSQv+b}")
            k = 0
            for j in range(9):
                for b in range(2):
                    w = ar(WF(s % 2, j), 4); x = vr(X(b, s), 4); acc = vr(ACC(j, b), 4)
                    a(f"v_mfma_f32_16x16x32_bf16 {acc}, {x}, {w}, {acc}" if vpath else f"v_mfma_f32_16x16x32_bf16 {acc}, {w}, {x}, {acc}")
                    if k < 9:
                        for r in nxt[2*k:2*k+2]: a(r)
                    if k >= 2 and dots: a(dots.pop(0))
                    k += 1
            a(f"s_cmp_lg_u32 s{sWave}, {s % 4}\ns_cbranch_scc1 {name}_{tag}cs{s}")
            for j in range(9):
                a(f"v_mfma_f32_16x16x32_bf16 {ar(CSA(j),4)}, {ar(WF(s%2,j),4)}, {ar(ONES,4)}, {ar(CSA(j),4)}")
            a.label(f"{name}_{tag}cs{s}")
        pf.stamp(9)
        a.flush(10)
        a(f"""
        s_mul_i32 s25, s{sWave}, 576
        v_lshlrev_b32 v{T0}, 4, v{VG}
        v_add_u32 v{T0}, s25, v{T0}
        v_add_u32 v{T0}, {K1_CS_PART}, v{T0}
        v_cmp_eq_u32 vcc, 0, v{VT}
        s_and_saveexec_b64 s[32:33], vcc
        """)
        for j in range(9):
            a(f"ds_write_b128 v{T0}, {ar(CSA(j),4)} offset:{64*j}")
        a("s_mov_b64 exec, s[32:33]")
        for b in range(2):
            red_rows_add(a, SUM + b, T1); red_rows_add(a, SSQv + b, T1)
        for b in range(2):
            a(f"""
            v_mul_f32 v{SUM+b}, {f32(1.0/D)}, v{SUM+b}
            v_mul_f32 v{T1}, v{SUM+b}, v{SUM+b}
            v_mov_b32 v{T2}, {f32(1.0/D)}
            v_fma_f32 v{SSQv+b}, v{SSQv+b}, v{T2}, -v{T1}
            v_max_f32 v{SSQv+b}, 0, v{SSQv+b}
            v_add_f32 v{SSQv+b}, {f32(EPS)}, v{SSQv+b}
            v_rsq_f32 v{SSQv+b}, v{SSQv+b}
            """)
        a("s_waitcnt lgkmcnt(0)\ns_barrier")
        a(f"""
        v_lshlrev_b32 v{T0}, 2, v0
        v_add_u32 v{T0}, {K1_CS_PART}, v{T0}
        v_cmp_gt_u32 vcc, 144, v0
        s_and_saveexec_b64 s[32:33], vcc
        ds_read_b32 v{TMP}, v{T0}
        ds_read_b32 v{TMP+1}, v{T0} offset:576
        ds_read_b32 v{TMP+2}, v{T0} offset:1152
        ds_read_b32 v{TMP+3}, v{T0} offset:1728
        s_waitcnt lgkmcnt(0)
        v_add_f32 v{TMP}, v{TMP}, v{TMP+1}
        v_add_f32 v{TMP+2}, v{TMP+2}, v{TMP+3}
        v_add_f32 v{TMP}, v{TMP}, v{TMP+2}
        ds_write_b32 v{T0}, v{TMP} offset:{4*576}
        s_mov_b64 exec, s[32:33]
        """)
    def dma_stage_tag(st, tag):
        slot = st % 5
        a(f"s_add_u32 s25, s26, {st*96*3*D*2}")
        for jj in range(7):
            if jj == 6:
                a(f"s_cmp_eq_u32 s{sWave}, 3\ns_cbranch_scc1 {name}_{tag}skip{st}")
            a(f"s_add_u32 m0, s27, {slot*K1_SLOT + jj*4096}")
            a(f"buffer_load_dwordx4 v{VD+jj}, s[{sW}:{sW+3}], s25 offen lds")
            if jj == 6: a.label(f"{name}_{tag}skip{st}")

    def chunk_off():
        a(f"""
        s_lshr_b32 s34, s{sT}, 5
        s_mul_i32 s34, s34, {KV_CHUNK}
        s_bfe_u32 s35, s{sT}, 0x20003
        s_mul_i32 s35, s35, {KV_STAGE}
        s_add_u32 s34, s34, s35
        s_and_b32 s35, s{sT}, 7
        """)
    a(f"""
    v_lshrrev_b32 v{T2}, 1, v{T1}
    v_lshl_add_u32 v{T2}, v{T1}, 1, v{T2}
    v_lshl_add_u32 v{VA}, v{T2}, 3, v{T0}
    v_add_u32 v{VA+1}, {2*K1_SLOT}, v{VA}
    v_add_u32 v{VA+2}, {4*K1_SLOT}, v{VA}
    v_mul_u32_u24 v{T2}, 72, v{T1}
    v_add3_u32 v{VZ}, v{T2}, v{T0}, 32
    v_add_u32 v{VZ+1}, {2*K1_SLOT}, v{VZ}
    v_add_u32 v{VZ+2}, {4*K1_SLOT}, v{VZ}
    """)
    main_loop(False)
    CSV = X0
    NRM = X0 + 36
    PK = X0 + 40
    NS = X0 + 60
    a(f"""
    s_cmp_ge_u32 s{sNB}, 4
    s_cbranch_scc1 {name}_noq
    v_mul_f32 v{SSQv}, {f32(QSCALE)}, v{SSQv}
    v_mul_f32 v{SSQv+1}, {f32(QSCALE)}, v{SSQv+1}
    s_cmp_lg_u32 s{sNB}, 0
    s_cbranch_scc1 {name}_noq
    s_lshl_b32 s25, s{sT}, 7
    s_add_u32 s25, s25, {MU1}
    v_lshlrev_b32 v{T1}, 2, v{VT}
    buffer_store_dword v{SUM}, v{T1}, s[{sWS}:{sWS+3}], s25 offen
    buffer_store_dword v{SUM+1}, v{T1}, s[{sWS}:{sWS+3}], s25 offen offset:64
    """)
    a.label(f"{name}_noq")
    a(f"""
    v_mul_f32 v{NRM}, v{SUM}, v{SSQv}
    v_mul_f32 v{NRM+1}, v{SUM+1}, v{SSQv+1}
    v_lshlrev_b32 v{T0}, 4, v{VG}
    v_add_u32 v{T0}, {K1_CS}, v{T0}
    s_waitcnt lgkmcnt(0)
    s_barrier
    """)
    for j in range(9):
        a(f"ds_read_b128 {vr(CSV+4*j,4)}, v{T0} offset:{64*j}")
    a("s_waitcnt lgkmcnt(0)")
    for j in range(9):
        for b in range(2):
            for i in range(4):
                a(f"v_mul_f32 v{T1}, v{NRM+b}, v{CSV+4*j+i}\nv_fma_f32 v{ACC(j,b)+i}, v{ACC(j,b)+i}, v{SSQv+b}, -v{T1}")
    pf.stamp(10)
    a(f"s_cmp_ge_u32 s{sNB}, 4\ns_cbranch_scc1 {name}_kst")
    a(f"""
    s_lshl_b32 s25, s{sNB}, 19
    s_lshl_b32 s26, s{sT}, 10
    s_add_u32 s25, s25, s26
    v_lshrrev_b32 v{T0}, 1, v{VG}
    v_lshlrev_b32 v{T0}, 16, v{T0}
    v_and_b32 v{T1}, 1, v{VG}
    v_lshl_add_u32 v{T0}, v{T1}, 9, v{T0}
    v_lshl_add_u32 v{T0}, v{VT}, 4, v{T0}
    """)
    for p in range(4):
        for b in range(2):
            o = PK + 4 * ((p * 2 + b) % 4)
            for i in range(2):
                a(f"v_cvt_pk_bf16_f32 v{o+i}, v{ACC(2*p,b)+2*i}, v{ACC(2*p,b)+2*i+1}")
                a(f"v_cvt_pk_bf16_f32 v{o+2+i}, v{ACC(2*p+1,b)+2*i}, v{ACC(2*p+1,b)+2*i+1}")
            a(f"buffer_store_dwordx4 {vr(o,4)}, v{T0}, s[{sWS}:{sWS+3}], s25 offen offset:{256*b}")
        a(f"s_add_u32 s25, s25, {2*65536}")
    a(f"""
    s_lshl_b32 s25, s{sNB}, 16
    s_lshl_b32 s26, s{sT}, 7
    s_add_u32 s25, s25, s26
    s_add_u32 s25, s25, {QT}
    s_add_u32 s26, s25, 8192
    v_lshlrev_b32 v{T0}, 14, v{VG}
    v_lshl_add_u32 v{T0}, v{VT}, 2, v{T0}
    """)
    for b in range(2):
        a(f"v_cvt_pk_bf16_f32 v{NS+2*b}, v{ACC(8,b)}, v{ACC(8,b)+1}\nv_cvt_pk_bf16_f32 v{NS+2*b+1}, v{ACC(8,b)+2}, v{ACC(8,b)+3}")
        a(f"buffer_store_dword v{NS+2*b}, v{T0}, s[{sWS}:{sWS+3}], s25 offen offset:{64*b}")
        a(f"buffer_store_dword v{NS+2*b+1}, v{T0}, s[{sWS}:{sWS+3}], s26 offen offset:{64*b}")
    a(f"s_branch {name}_fin")
    a.label(f"{name}_kst")
    chunk_off()
    a(f"""
    s_sub_u32 s25, s{sNB}, 4
    s_mul_i32 s25, s25, {8*KV_HEAD}
    s_add_u32 s25, s25, s34
    s_add_u32 s36, s25, {KV}
    s_lshl_b32 s26, s35, 10
    s_add_u32 s25, s36, s26
    v_and_b32 v{T2}, 7, v{VT}
    v_lshrrev_b32 v{T3}, 3, v{VT}
    v_lshl_or_b32 v{T2}, v{T3}, 4, v{T2}
    v_lshlrev_b32 v{T2}, 4, v{T2}
    v_lshrrev_b32 v{T0}, 1, v{VG}
    v_mul_u32_u24 v{T0}, {KV_HEAD}, v{T0}
    v_and_b32 v{T1}, 1, v{VG}
    v_lshl_add_u32 v{T0}, v{T1}, 9, v{T0}
    v_add_u32 v{T0}, v{T0}, v{T2}
    """)
    for p in range(4):
        for b in range(2):
            o = PK + 4 * ((p * 2 + b) % 4)
            for i in range(2):
                a(f"v_cvt_pk_bf16_f32 v{o+i}, v{ACC(2*p,b)+2*i}, v{ACC(2*p,b)+2*i+1}")
                a(f"v_cvt_pk_bf16_f32 v{o+2+i}, v{ACC(2*p+1,b)+2*i}, v{ACC(2*p+1,b)+2*i+1}")
            a(f"buffer_store_dwordx4 {vr(o,4)}, v{T0}, s[{sWS}:{sWS+3}], s25 offen offset:{128*b}")
            dst = NS + p if b == 0 else T1
            a(f"v_dot2_f32_bf16 v{dst}, v{o}, v{o}, 0")
            for i in range(1, 4): a(f"v_dot2_f32_bf16 v{dst}, v{o+i}, v{o+i}, v{dst}")
            if b == 1: a(f"v_max_f32 v{NS+p}, v{NS+p}, v{T1}")
        a(f"s_add_u32 s25, s25, {2*KV_HEAD}")
    a(f"""
    s_lshr_b32 s26, s35, 2
    s_lshl_b32 s26, s26, 9
    s_and_b32 s27, s35, 3
    s_lshl_b32 s27, s27, 2
    s_add_u32 s25, s36, s26
    s_add_u32 s25, s25, s27
    s_add_u32 s25, s25, {KV_KT}
    s_add_u32 s26, s25, {KV_HEAD}
    v_mul_u32_u24 v{T0}, {2*KV_HEAD}, v{VG}
    v_add_u32 v{T0}, v{T0}, v{T2}
    """)
    for b in range(2):
        o = PK + 16 + 2 * b
        a(f"v_cvt_pk_bf16_f32 v{o}, v{ACC(8,b)}, v{ACC(8,b)+1}\nv_cvt_pk_bf16_f32 v{o+1}, v{ACC(8,b)+2}, v{ACC(8,b)+3}")
        a(f"buffer_store_dword v{o}, v{T0}, s[{sWS}:{sWS+3}], s25 offen offset:{128*b}")
        a(f"buffer_store_dword v{o+1}, v{T0}, s[{sWS}:{sWS+3}], s26 offen offset:{128*b}")
        for i in range(2):
            dst = NS + 4 + i if b == 0 else T1
            a(f"v_dot2_f32_bf16 v{dst}, v{o+i}, v{o+i}, 0")
            if b == 1: a(f"v_max_f32 v{NS+4+i}, v{NS+4+i}, v{T1}")
    for sh in (8, 4, 2, 1):
        for i in range(6):
            a(f"v_max_f32_dpp v{NS+i}, v{NS+i}, v{NS+i} row_ror:{sh} row_mask:0xf bank_mask:0xf")
    a(f"""
    s_sub_u32 s25, s{sNB}, 4
    s_lshl_b32 s25, s25, 13
    s_lshl_b32 s26, s{sT}, 4
    s_add_u32 s25, s25, s26
    s_add_u32 s25, s25, {KMAX}
    v_lshrrev_b32 v{T0}, 1, v{VG}
    v_lshlrev_b32 v{T0}, 10, v{T0}
    v_and_b32 v{T1}, 1, v{VG}
    v_lshl_add_u32 v{T0}, v{T1}, 2, v{T0}
    v_lshlrev_b32 v{T1}, 11, v{VG}
    v_cmp_eq_u32 vcc, 0, v{VT}
    s_and_saveexec_b64 s[32:33], vcc
    s_add_u32 s26, s25, 4096
    """)
    for p in range(4):
        a(f"buffer_store_dword v{NS+p}, v{T0}, s[{sWS}:{sWS+3}], s{25 if p < 2 else 26} offen offset:{2048*(p%2)}")
    a(f"buffer_store_dword v{NS+4}, v{T1}, s[{sWS}:{sWS+3}], s25 offen offset:8")
    a(f"buffer_store_dword v{NS+5}, v{T1}, s[{sWS}:{sWS+3}], s25 offen offset:1032")
    a(f"s_branch {name}_fin")

    a.label(f"{name}_vpath")
    a(f"""
    v_lshl_add_u32 v{VA}, v{T1}, 3, v{T0}
    v_add_u32 v{VA+1}, {2*K1_SLOT}, v{VA}
    v_add_u32 v{VA+2}, {4*K1_SLOT}, v{VA}
    """)
    main_loop(True)
    RR = X0 + 40
    a(f"""
    v_mul_f32 v{NRM+1}, v{SUM}, v{SSQv}
    v_mov_b32 v{NRM}, v{SSQv}
    v_mul_f32 v{NRM+3}, v{SUM+1}, v{SSQv+1}
    v_mov_b32 v{NRM+2}, v{SSQv+1}
    s_lshl_b32 s25, s{sWave}, 8
    v_lshlrev_b32 v{T0}, 3, v{VT}
    v_add_u32 v{T0}, s25, v{T0}
    v_add_u32 v{T0}, {K1_ST}, v{T0}
    ds_write_b64 v{T0}, {vr(NRM,2)}
    ds_write_b64 v{T0}, {vr(NRM+2,2)} offset:128
    v_lshlrev_b32 v{T0}, 5, v{VG}
    v_add_u32 v{T0}, s25, v{T0}
    v_add_u32 v{T0}, {K1_ST}, v{T0}
    v_lshlrev_b32 v{T1}, 2, v{VT}
    v_add_u32 v{T1}, {K1_CS}, v{T1}
    s_waitcnt lgkmcnt(0)
    s_barrier
    """)
    for b in range(2):
        a(f"ds_read_b128 {vr(RR+8*b,4)}, v{T0} offset:{128*b}\nds_read_b128 {vr(RR+8*b+4,4)}, v{T0} offset:{128*b+16}")
    for j in range(9):
        a(f"ds_read_b32 v{CSV+j}, v{T1} offset:{64*j}")
    chunk_off()
    a(f"""
    s_sub_u32 s25, s{sNB}, 8
    s_mul_i32 s25, s25, {8*KV_HEAD}
    s_add_u32 s25, s25, s34
    s_mul_i32 s26, s35, {KV_VT}
    s_add_u32 s25, s25, s26
    s_add_u32 s25, s25, {KV + KV_V}
    v_mul_u32_u24 v{T3}, {KV_VG}, v{VG}
    s_waitcnt lgkmcnt(0)
    """)
    PKV = X0 + 60
    pf.stamp(10)
    for j in range(9):
        o = PKV + 4 * (j % 4)
        for b in range(2):
            for i in range(4):
                a(f"v_mul_f32 v{T1}, v{RR+8*b+2*i+1}, v{CSV+j}\nv_fma_f32 v{ACC(j,b)+i}, v{ACC(j,b)+i}, v{RR+8*b+2*i}, -v{T1}")
            for i in range(2):
                a(f"v_cvt_pk_bf16_f32 v{o+2*b+i}, v{ACC(j,b)+2*i}, v{ACC(j,b)+2*i+1}")
        ad = PKV + 16 + (j % 4)
        a(f"""
        v_add_u32 v{T0}, {16*j}, v{VT}
        v_mul_u32_u24 v{T1}, 3641, v{T0}
        v_lshrrev_b32 v{T1}, 16, v{T1}
        v_mul_u32_u24 v{T2}, {KV_HEAD - 288}, v{T1}
        v_lshl_add_u32 v{T2}, v{T0}, 4, v{T2}
        v_add_u32 v{ad}, v{T2}, v{T3}
        buffer_store_dwordx4 {vr(o,4)}, v{ad}, s[{sWS}:{sWS+3}], s25 offen
        """)
    a(f"""
    v_bfe_u32 v{T0}, v{LANE}, 2, 3
    v_mul_u32_u24 v{T0}, {KV_HEAD}, v{T0}
    v_and_b32 v{T1}, 3, v{LANE}
    v_mul_u32_u24 v{T1}, {KV_VG}, v{T1}
    v_add_u32 v{T0}, v{T0}, v{T1}
    v_mov_b32 v{TMP}, s{sONE}
    v_mov_b32 v{TMP+1}, s{sONE}
    v_mov_b32 v{TMP+2}, s{sONE}
    v_mov_b32 v{TMP+3}, s{sONE}
    buffer_store_dwordx4 {vr(TMP,4)}, v{T0}, s[{sWS}:{sWS+3}], s25 offen offset:288
    s_branch {name}_fin
    """)

    a.label(f"{name}_aux")
    srd(a, sW, 28, D * D * 2)
    a(f"""
    s_sub_u32 s25, s2, 192
    s_lshl_b32 s25, s25, 6
    s_lshl_b32 s26, s{sWave}, 4
    s_add_u32 s25, s25, s26
    v_add_u32 v{T3}, s25, v{VT}
    v_mul_u32_u24 v{T0}, {D*2}, v{T3}
    v_mul_u32_u24 v{T1}, 288, v{VG}
    v_add_u32 v{T0}, v{T0}, v{T1}
    """)
    for i in range(18):
        a(f"buffer_load_dwordx4 {vr(X0+4*i,4)}, v{T0}, s[{sW}:{sW+3}], 0 offen offset:{16*i}")
    HD, DD, SS, GG, JJ = TMP, TMP + 1, TMP + 2, TMP + 3, TMP + 4
    a(f"""
    v_mov_b32 v{SUM}, 0
    v_mul_u32_u24 v{HD}, 3641, v{T3}
    v_lshrrev_b32 v{HD}, 16, v{HD}
    v_mul_u32_u24 v{DD}, 18, v{HD}
    v_sub_u32 v{DD}, v{T3}, v{DD}
    v_lshrrev_b32 v{SS}, 1, v{HD}
    v_and_b32 v{GG}, 1, v{HD}
    v_lshlrev_b32 v{GG}, 1, v{GG}
    v_bfe_u32 v{T1}, v{DD}, 2, 1
    v_or_b32 v{GG}, v{GG}, v{T1}
    v_bfe_u32 v{JJ}, v{DD}, 3, 1
    v_lshlrev_b32 v{JJ}, 2, v{JJ}
    v_and_b32 v{T1}, 3, v{DD}
    v_or_b32 v{JJ}, v{JJ}, v{T1}
    v_cmp_le_u32 vcc, 16, v{DD}
    v_lshrrev_b32 v{T1}, 4, v{HD}
    v_add_u32 v{T1}, 16, v{T1}
    v_cndmask_b32 v{SS}, v{SS}, v{T1}, vcc
    v_bfe_u32 v{T1}, v{HD}, 2, 2
    v_cndmask_b32 v{GG}, v{GG}, v{T1}, vcc
    v_and_b32 v{T1}, 3, v{HD}
    v_lshlrev_b32 v{T1}, 1, v{T1}
    v_and_b32 v{T2}, 1, v{DD}
    v_or_b32 v{T1}, v{T1}, v{T2}
    v_cndmask_b32 v{JJ}, v{JJ}, v{T1}, vcc
    v_lshlrev_b32 v{T1}, 1, v{JJ}
    v_lshl_add_u32 v{T1}, v{GG}, 5, v{T1}
    v_lshl_add_u32 v{T1}, v{SS}, 7, v{T1}
    v_and_b32 v{T2}, 1, v{VG}
    v_lshl_add_u32 v{T3}, v{T2}, 4, v{T1}
    v_lshlrev_b32 v{T2}, 4, v{T2}
    s_waitcnt vmcnt(0)
    """)
    for i in range(72):
        a(f"v_dot2_f32_bf16 v{SUM}, v{X0+i}, s{sONE}, v{SUM}")
    red_rows_add(a, SUM, T1)
    a(f"""
    v_cvt_pk_bf16_f32 v{T0}, v{SUM}, v{SUM}
    v_and_b32 v{T1}, 0xffff0000, v{T0}
    v_sub_f32 v{T1}, v{SUM}, v{T1}
    v_cvt_pk_bf16_f32 v{TMP+8}, v{SUM}, v{T1}
    v_lshrrev_b32 v{TMP+8}, v{T2}, v{TMP+8}
    s_mov_b32 s25, {WOM}
    buffer_store_short v{TMP+8}, v{T3}, s[{sWS}:{sWS+3}], s25 offen
    """)
    a.label(f"{name}_fin")
    pf.stamp(11)
    pf.dump(sWS, sWave, 244)
    a.label(f"{name}_end")
    a("s_endpgm")
    return dict(name=name, grid=K1_GRID, block=256, lds=K1_LDS, vgpr=256 + 112, accum=256, sgpr=100 if Prof.enabled else 48)
```

```python
from asmlib import *
from layout import *
from k1 import srd

K2_LDS = KV_HEAD
BOUND_T = 40.0

class LQ:
    def __init__(self, a): self.a = a; self.q = []
    def issue(self, tag, text): self.a(text); self.q.append(tag)
    def wait(self, tag):
        if tag not in self.q: return
        i = len(self.q) - 1 - self.q[::-1].index(tag)
        n = len(self.q) - 1 - i
        self.a(f"s_waitcnt lgkmcnt({min(n,15)})")
        self.q = self.q[i + 1:]
    def clear(self): self.q = []

def gen_k2(a, name, prefetch=None):
    SB = lambda i: 0 + 16 * (i % 2) + 8
    C = 40; O = 56; P = 72; KF = 80; KT = 84; V0 = 88; V1 = 92; QMv = 96; QW = 100
    VK = 118; VV = 119; LANE = 1; T0 = 2; T1 = 3; T2 = 4; T3 = 5; QTL = 6; VL16 = 7
    sWS = 8; sWave = 12; sHead = 13; sTq = 14; sKS = 15; sBase = 16
    WIN = [2, 6, 0, 4, 10, 14, 8, 12]
    a.raw(f".p2align 8\n{name}:")
    pf = Prof(a, 1)
    a(f"""
    s_cmp_ge_u32 s2, 256
    s_cbranch_scc1 {name}_end
    """)
    pf.start()
    a(f"""
    s_load_dwordx2 s[4:5], s[0:1], 72
    v_lshrrev_b32 v{T0}, 6, v0
    v_and_b32 v{LANE}, 63, v0
    v_readfirstlane_b32 s{sWave}, v{T0}
    v_lshlrev_b32 v{VL16}, 4, v{LANE}
    s_and_b32 s17, s2, 7
    s_lshr_b32 s18, s2, 3
    s_lshl_b32 s{sHead}, s17, 2
    s_lshr_b32 s19, s18, 3
    s_add_u32 s{sHead}, s{sHead}, s19
    s_and_b32 s18, s18, 7
    s_lshl_b32 s{sTq}, s18, 3
    s_and_b32 s19, s{sWave}, 7
    s_add_u32 s{sTq}, s{sTq}, s19
    s_lshr_b32 s{sKS}, s{sWave}, 3
    s_mul_i32 s{sBase}, s{sHead}, {KV_HEAD}
    s_add_u32 s{sBase}, s{sBase}, {KV}
    s_waitcnt lgkmcnt(0)
    """)
    srd(a, sWS, 4, WS_BYTES)
    a(f"""
    s_lshl_b32 s17, s{sHead}, 16
    s_lshl_b32 s18, s{sTq}, 10
    s_add_u32 s17, s17, s18
    buffer_load_dwordx4 {vr(QMv,4)}, v{VL16}, s[{sWS}:{sWS+3}], s17 offen
    s_lshl_b32 s17, s{sHead}, 13
    s_lshl_b32 s18, s{sTq}, 7
    s_add_u32 s17, s17, s18
    s_add_u32 s17, s17, {QT}
    v_and_b32 v{T0}, 31, v0
    v_lshlrev_b32 v{T0}, 2, v{T0}
    buffer_load_dword v{QTL}, v{T0}, s[{sWS}:{sWS+3}], s17 offen
    s_lshl_b32 s17, s{sHead}, 10
    s_add_u32 s17, s17, {KMAX}
    buffer_load_dwordx4 {vr(P,4)}, v{VL16}, s[{sWS}:{sWS+3}], s17 offen
    s_lshl_b32 s18, s{sWave}, 10
    s_add_u32 s17, s{sBase}, s18
    """)
    for k in range(10):
        if k == 9: a(f"s_cmp_ge_u32 s{sWave}, 4\ns_cbranch_scc1 {name}_dskip")
        a(f"s_add_u32 m0, s18, {k*16384}")
        a(f"buffer_load_dwordx4 v{VL16}, s[{sWS}:{sWS+3}], s17 offen lds")
        if k < 9: a(f"s_add_u32 s17, s17, 16384")
    a.label(f"{name}_dskip")
    a(f"""
    s_mul_i32 s17, s{sKS}, {KV_CHUNK}
    v_add_u32 v{VK}, s17, v{VL16}
    v_and_b32 v{T0}, 31, v0
    v_and_b32 v{T1}, 3, v0
    v_or_b32 v{T2}, 4, v{T1}
    v_subrev_u32 v{T3}, 20, v{T0}
    v_cmp_gt_u32 vcc, 8, v{T3}
    v_cndmask_b32 v{T2}, v{T2}, v{T1}, vcc
    v_cmp_gt_u32 vcc, 19, v{T0}
    v_cndmask_b32 v{T2}, v{T2}, v{T0}, vcc
    v_lshlrev_b32 v{T2}, 4, v{T2}
    v_lshrrev_b32 v{T1}, 5, v{LANE}
    v_mul_u32_u24 v{T1}, {KV_VG}, v{T1}
    s_add_u32 s17, s17, {KV_V}
    v_add3_u32 v{VV}, v{T2}, v{T1}, s17
    """)
    for i in range(18): a(f"v_mov_b32 v{QW+i}, 0")
    for i in range(16): a(f"v_mov_b32 v{O+i}, 0")
    pf.stamp(2)
    a("s_waitcnt vmcnt(9)")
    pf.stamp(3)
    a(f"v_dot2_f32_bf16 v{T0}, v{QMv}, v{QMv}, 0")
    for i in range(1, 4): a(f"v_dot2_f32_bf16 v{T0}, v{QMv+i}, v{QMv+i}, v{T0}")
    for sh in (8, 4, 2, 1):
        for i in range(3): a(f"v_max_f32_dpp v{P+i}, v{P+i}, v{P+i} row_ror:{sh} row_mask:0xf bank_mask:0xf")
    a(f"v_mov_b32 v{T1}, v{T0}\nv_permlane32_swap_b32 v{T0}, v{T1}\nv_add_f32 v{T0}, v{T0}, v{T1}")
    a(f"v_dot2_f32_bf16 v{T0}, v{QTL}, v{QTL}, v{T0}")
    for i in range(3):
        a(f"v_mov_b32 v{P+4+i}, v{P+i}")
    for i in range(3):
        a(f"v_permlane32_swap_b32 v{P+i}, v{P+4+i}")
    for i in range(3):
        a(f"v_max_f32 v{P+i}, v{P+i}, v{P+4+i}\nv_mov_b32 v{P+4+i}, v{P+i}")
    for i in range(3):
        a(f"v_permlane16_swap_b32 v{P+i}, v{P+4+i}")
    for i in range(3):
        a(f"v_max_f32 v{P+i}, v{P+i}, v{P+4+i}")
    a(f"""
    v_add_f32 v{P}, v{P}, v{P+1}
    v_add_f32 v{P}, v{P}, v{P+2}
    v_mul_f32 v{T0}, v{T0}, v{P}
    v_sqrt_f32 v{T0}, v{T0}
    v_cmp_gt_u32 vcc, 32, v{LANE}
    v_mul_f32 v{T0}, {f32(1.0 + 1.0/64)}, v{T0}
    v_cndmask_b32 v{QW+2}, 0, v{QTL}, vcc
    v_cndmask_b32 v{QW+7}, 0, v{QTL}, vcc
    v_cndmask_b32 v{QW+10}, v{QTL}, v{QW}, vcc
    v_cndmask_b32 v{QW+15}, v{QTL}, v{QW}, vcc
    v_mov_b32 v{T1}, {f32(BOUND_T)}
    v_cmp_nle_f32 vcc, v{T0}, v{T1}
    s_cmp_eq_u64 vcc, 0
    s_cbranch_scc1 {name}_fast
    """)
    KB = [O, O + 4, O + 8, O + 12, V0, V1, P, P + 4]
    a(f"""
    v_mov_b32 v{T0}, 0xff800000
    s_mov_b32 s17, s{sBase}
    s_mov_b32 s19, 8
    """)
    a.label(f"{name}_fb")
    a(f"s_add_u32 s20, s17, 4096\ns_add_u32 s21, s17, 8192")
    a(f"buffer_load_dwordx4 {vr(KT,4)}, v{VL16}, s[{sWS}:{sWS+3}], s21 offen")
    for tt in range(8):
        a(f"buffer_load_dwordx4 {vr(KB[tt],4)}, v{VL16}, s[{sWS}:{sWS+3}], s{17 if tt < 4 else 20} offen offset:{1024*(tt%4)}")
    a("s_waitcnt vmcnt(0)")
    for tt in range(8):
        s = SB(tt)
        a(f"v_mfma_f32_32x32x16_bf16 {vr(s,16)}, {vr(KB[tt],4)}, {vr(QMv,4)}, 0")
        a(f"v_mfma_f32_32x32x16_bf16 {vr(s,16)}, {vr(KT,4)}, {vr(QW+WIN[tt],4)}, {vr(s,16)}")
        for i in range(8): a(f"v_max3_f32 v{T0}, v{s+2*i}, v{s+2*i+1}, v{T0}")
    a(f"""
    s_add_u32 s17, s17, {KV_CHUNK}
    s_sub_u32 s19, s19, 1
    s_cmp_lg_u32 s19, 0
    s_cbranch_scc1 {name}_fb
    v_mov_b32 v{T1}, v{T0}
    v_permlane32_swap_b32 v{T0}, v{T1}
    v_max_f32 v{T0}, v{T0}, v{T1}
    """)
    for i in range(16): a(f"v_mov_b32 v{O+i}, 0")
    a.label(f"{name}_fast")
    a.flush(4)
    for i in range(16): a(f"v_sub_f32 v{C+i}, 0, v{T0}")
    lq = LQ(a)
    def koff(i): return ((i // 8) % 2) * KV_STAGE + (i % 8) * 1024
    def voff(i, m): return ((i // 8) % 2) * KV_STAGE + (i % 8) * KV_VT + m * 2 * KV_VG
    VK2 = 120; VV2 = 121
    a(f"v_add_u32 v{VK2}, {2*KV_STAGE}, v{VK}\nv_add_u32 v{VV2}, {2*KV_STAGE}, v{VV}")
    rk = lambda i: VK if i < 16 else VK2
    rv = lambda i: VV if i < 16 else VV2
    def rdK(i): lq.issue(("K", i), f"ds_read_b128 {vr(KF,4)}, v{rk(i)} offset:{koff(i)}")
    def rdT(i): lq.issue(("T", i // 8), f"ds_read_b128 {vr(KT,4)}, v{rk(i)} offset:{((i//8)%2)*KV_STAGE + KV_KT}")
    def rdV(i, m): lq.issue(("V", i, m), f"ds_read_b128 {vr(V1 if m else V0,4)}, v{rv(i)} offset:{voff(i,m)}")
    def mS1(i): a(f"v_mfma_f32_32x32x16_bf16 {vr(SB(i),16)}, {vr(KF,4)}, {vr(QMv,4)}, {vr(C,16)}")
    def mS2(i): a(f"v_mfma_f32_32x32x16_bf16 {vr(SB(i),16)}, {vr(KT,4)}, {vr(QW+WIN[i%8],4)}, {vr(SB(i),16)}")
    vw = {0: 6, 1: 4, 2: 2, 3: 0}
    pf.stamp(4)
    a(f"s_waitcnt vmcnt({vw[0]})\ns_barrier")
    pf.stamp(5)
    rdK(0); rdT(0); rdV(0, 0); rdV(0, 1)
    lq.wait(("K", 0)); mS1(0); rdK(1); lq.wait(("T", 0)); mS2(0)
    N = 32
    for i in range(N):
        s = SB(i)
        ex = lambda lo: [a(f"v_exp_f32 v{s+r}, v{s+r}") for r in range(lo, lo + 4)]
        cv = lambda m: [a(f"v_cvt_pk_bf16_f32 v{P+4*m+r}, v{s+8*m+2*r}, v{s+8*m+2*r+1}") for r in range(4)]
        if i % 8 == 6 and i + 2 < N:
            pf.stamp(6 + 2 * (i // 8))
            a(f"s_waitcnt vmcnt({vw[i//8+1]})\ns_barrier")
            pf.stamp(7 + 2 * (i // 8))
        if i + 1 < N:
            lq.wait(("K", i + 1)); mS1(i + 1)
            if i + 2 < N: rdK(i + 2)
        ex(0)
        if i + 1 < N:
            lq.wait(("T", (i + 1) // 8)); mS2(i + 1)
            if (i + 1) % 8 == 7 and i + 2 < N: rdT(i + 2)
        ex(4); cv(0); ex(8)
        lq.wait(("V", i, 0))
        a(f"v_mfma_f32_32x32x16_bf16 {vr(O,16)}, {vr(V0,4)}, {vr(P,4)}, {vr(O,16)}")
        if i + 1 < N: rdV(i + 1, 0)
        ex(12); cv(1)
        lq.wait(("V", i, 1))
        a(f"v_mfma_f32_32x32x16_bf16 {vr(O,16)}, {vr(V1,4)}, {vr(P+4,4)}, {vr(O,16)}")
        if i + 1 < N: rdV(i + 1, 1)
    pf.stamp(12)
    a(f"""
    s_and_b32 s17, s{sWave}, 7
    s_mul_i32 s17, s17, 3072
    v_add_u32 v{T0}, s17, v{VL16}
    s_barrier
    s_cmp_eq_u32 s{sKS}, 0
    s_cbranch_scc1 {name}_fin
    ds_write_b128 v{T0}, {vr(O,4)}
    ds_write_b128 v{T0}, {vr(O+4,4)} offset:1024
    ds_write_b128 v{T0}, {vr(O+8,4)} offset:2048
    s_waitcnt lgkmcnt(0)
    s_barrier
    s_branch {name}_done
    """)
    a.label(f"{name}_fin")
    a(f"""
    s_barrier
    ds_read_b128 {vr(8,4)}, v{T0}
    ds_read_b128 {vr(12,4)}, v{T0} offset:1024
    ds_read_b128 {vr(16,4)}, v{T0} offset:2048
    s_lshr_b32 s17, s{sHead}, 1
    s_lshl_b32 s17, s17, 10
    s_and_b32 s18, s{sHead}, 1
    s_lshl_b32 s18, s18, 9
    s_add_u32 s17, s17, s18
    s_mul_i32 s18, s{sTq}, {2*18432}
    s_add_u32 s18, s18, {OF}
    s_add_u32 s17, s17, s18
    v_bfe_u32 v{T1}, v{LANE}, 4, 1
    v_mul_u32_u24 v{T1}, 18432, v{T1}
    v_and_b32 v{T2}, 15, v{LANE}
    v_lshl_add_u32 v{T1}, v{T2}, 4, v{T1}
    v_lshrrev_b32 v{T2}, 5, v{LANE}
    v_lshl_add_u32 v{T2}, v{T2}, 8, v{T1}
    s_lshr_b32 s19, s{sHead}, 2
    s_lshl_b32 s19, s19, 8
    s_and_b32 s20, s{sHead}, 3
    s_lshl_b32 s20, s20, 2
    s_add_u32 s19, s19, s20
    s_add_u32 s19, s19, 16384
    s_add_u32 s19, s19, s18
    s_waitcnt lgkmcnt(0)
    """)
    for i in range(11): a(f"v_add_f32 v{O+i}, v{O+i}, v{8+i}")
    a(f"""
    v_mov_b32 v{T3}, v{O+10}
    v_permlane32_swap_b32 v{O+10}, v{T3}
    v_rcp_f32 v{T3}, v{O+10}
    """)
    for i in range(10): a(f"v_mul_f32 v{O+i}, v{O+i}, v{T3}")
    for i in range(5): a(f"v_cvt_pk_bf16_f32 v{P+i}, v{O+2*i}, v{O+2*i+1}")
    a(f"""
    buffer_store_dwordx4 {vr(P,4)}, v{T2}, s[{sWS}:{sWS+3}], s17 offen
    s_mov_b32 exec_hi, 0
    buffer_store_dword v{P+4}, v{T1}, s[{sWS}:{sWS+3}], s19 offen
    """)
    a.label(f"{name}_done")
    pf.stamp(13)
    pf.dump(sWS, sWave, 8)
    a.label(f"{name}_end")
    a("s_endpgm")
    return dict(name=name, grid=256, block=1024, lds=K2_LDS, vgpr=124, accum=124, sgpr=100 if Prof.enabled else 32)
```

```python
S = 2048; D = 576; H = 32; DH = 18; F = 4608
QM   = 0x000000
QT   = 0x200000
KV   = 0x240000
KV_HEAD = 151552; KV_STAGE = 37888; KV_CHUNK = 18944; KV_KT = 8192; KV_V = 9216; KV_VT = 1216; KV_VG = 304
KMAX = 0x6E0000
MU1  = 0x6E8000
MU2  = 0x6EA000
SSQ  = 0x6EC000
WOM  = 0x6FC000
FLG  = 0x6FD000
OF   = 0x800000
HC   = 0xA40000
G    = 0x1000000
PART = 0x2400000
WDP  = 0x2C00000
WS_BYTES = 0x4000000
X_BYTES = S * D * 2
import math
QSCALE = (DH ** -0.5) * math.log2(math.e)
EPS = 1e-5
```

```python
import sys, importlib
sys.path.insert(0, "gen")
from asmlib import *
HEADER = open("sequential_preLN__mha_block__geglu_ffn__prompt.s.ref").read().split("; Override launch")[0]
def build(gens, path):
    a = Asm(); metas = []
    for g, name in gens:
        a.hist = []
        metas.append(g(a, name))
    s = HEADER
    for m in metas:
        s += f"; @launch kernel={m['name']} grid=({m['grid']},1,1) block=({m['block']},1,1) lds={m['lds']}\n"
    s += '.amdgcn_target "amdgcn-amd-amdhsa--gfx950"\n.text\n'
    for m in metas: s += f".globl {m['name']}\n.type {m['name']},@function\n"
    s += a.text() + "text_end:\n    s_endpgm\n"
    s += '.section .rodata,"a"\n'
    for m in metas: s += desc(m["name"], m["vgpr"], m["sgpr"], m["accum"])
    open(path, "w").write(s)
    print("instrs", a.count, "auto-nops", a.nops, "bytes", len(s))
def all_gens():
    from k1 import gen_k1
    from k2 import gen_k2
    gens = [(gen_k1, "k1_qkv_kernel"), (gen_k2, "k2_attn_kernel")]
    for mod, fn, nm in (("k3", "gen_k3", "k3_wo_kernel"), ("k4", "gen_k4", "k4_ffn1_kernel"), ("k5", "gen_k5", "k5_ffn2_kernel")):
        try:
            m = importlib.import_module(mod)
        except ModuleNotFoundError:
            break
        gens.append((getattr(m, fn), nm))
    return gens
if __name__ == "__main__":
    build(all_gens(), "full.s")
    Prof.enabled = True
    build(all_gens(), "prof.s")
```

```python
from asmlib import *
from layout import *
from k1 import srd

K2_LDS = KV_HEAD
BOUND_T = 40.0

class LQ:
    def __init__(self, a): self.a = a; self.q = []
    def issue(self, tag, text): self.a(text); self.q.append(tag)
    def wait(self, tag):
        if tag not in self.q: return
        i = len(self.q) - 1 - self.q[::-1].index(tag)
        n = len(self.q) - 1 - i
        self.a(f"s_waitcnt lgkmcnt({min(n,15)})")
        self.q = self.q[i + 1:]
    def clear(self): self.q = []

PF_AT = 7
PF_STEP = 2
def gen_k2(a, name, prefetch=None):
    PFV = 122
    SB = lambda i: 0 + 16 * (i % 2) + 8
    C = 40; O = 56; P = 72; KF = 80; KT = 84; V0 = 88; V1 = 92; QMv = 96; QW = 100
    VK = 118; VV = 119; LANE = 1; T0 = 2; T1 = 3; T2 = 4; T3 = 5; QTL = 6; VL16 = 7
    sWS = 8; sWave = 12; sHead = 13; sTq = 14; sKS = 15; sBase = 16
    WIN = [2, 6, 0, 4, 10, 14, 8, 12]
    a.raw(f".p2align 8\n{name}:")
    pf = Prof(a, 1)
    a(f"""
    s_cmp_ge_u32 s2, 256
    s_cbranch_scc1 {name}_end
    """)
    pf.start()
    a(f"""
    s_load_dwordx2 s[4:5], s[0:1], 72
    s_load_dwordx4 s[24:27], s[0:1], 32
    s_load_dwordx2 s[28:29], s[0:1], 48
    s_load_dwordx2 s[30:31], s[0:1], 16
    v_lshrrev_b32 v{T0}, 6, v0
    v_and_b32 v{LANE}, 63, v0
    v_readfirstlane_b32 s{sWave}, v{T0}
    v_lshlrev_b32 v{VL16}, 4, v{LANE}
    """)
    code_pf(a, name, sWave, 15, 36, T0, PFV + 4, 2)
    a(f"""
    s_and_b32 s17, s2, 7
    s_lshr_b32 s18, s2, 3
    s_lshl_b32 s{sHead}, s17, 2
    s_lshr_b32 s19, s18, 3
    s_add_u32 s{sHead}, s{sHead}, s19
    s_and_b32 s18, s18, 7
    s_lshl_b32 s{sTq}, s18, 3
    s_and_b32 s19, s{sWave}, 7
    s_add_u32 s{sTq}, s{sTq}, s19
    s_lshr_b32 s{sKS}, s{sWave}, 3
    s_mul_i32 s{sBase}, s{sHead}, {KV_HEAD}
    s_add_u32 s{sBase}, s{sBase}, {KV}
    s_waitcnt lgkmcnt(0)
    """)
    srd(a, sWS, 4, WS_BYTES)
    a(f"""
    s_lshl_b32 s17, s{sHead}, 16
    s_lshl_b32 s18, s{sTq}, 10
    s_add_u32 s17, s17, s18
    buffer_load_dwordx4 {vr(QMv,4)}, v{VL16}, s[{sWS}:{sWS+3}], s17 offen
    s_lshl_b32 s17, s{sHead}, 13
    s_lshl_b32 s18, s{sTq}, 7
    s_add_u32 s17, s17, s18
    s_add_u32 s17, s17, {QT}
    v_and_b32 v{T0}, 31, v0
    v_lshlrev_b32 v{T0}, 2, v{T0}
    buffer_load_dword v{QTL}, v{T0}, s[{sWS}:{sWS+3}], s17 offen
    s_lshl_b32 s17, s{sHead}, 10
    s_add_u32 s17, s17, {KMAX}
    buffer_load_dwordx4 {vr(P,4)}, v{VL16}, s[{sWS}:{sWS+3}], s17 offen
    s_lshl_b32 s18, s{sWave}, 10
    s_add_u32 s17, s{sBase}, s18
    """)
    for k in range(10):
        if k == 9: a(f"s_cmp_ge_u32 s{sWave}, 4\ns_cbranch_scc1 {name}_dskip")
        a(f"s_add_u32 m0, s18, {k*16384}")
        a(f"buffer_load_dwordx4 v{VL16}, s[{sWS}:{sWS+3}], s17 offen lds")
        if k < 9: a(f"s_add_u32 s17, s17, 16384")
    a.label(f"{name}_dskip")
    a(f"""
    s_mul_i32 s17, s{sKS}, {KV_CHUNK}
    v_add_u32 v{VK}, s17, v{VL16}
    v_and_b32 v{T0}, 31, v0
    v_and_b32 v{T1}, 3, v0
    v_or_b32 v{T2}, 4, v{T1}
    v_subrev_u32 v{T3}, 20, v{T0}
    v_cmp_gt_u32 vcc, 8, v{T3}
    v_cndmask_b32 v{T2}, v{T2}, v{T1}, vcc
    v_cmp_gt_u32 vcc, 19, v{T0}
    v_cndmask_b32 v{T2}, v{T2}, v{T0}, vcc
    v_lshlrev_b32 v{T2}, 4, v{T2}
    v_lshrrev_b32 v{T1}, 5, v{LANE}
    v_mul_u32_u24 v{T1}, {KV_VG}, v{T1}
    s_add_u32 s17, s17, {KV_V}
    v_add3_u32 v{VV}, v{T2}, v{T1}, s17
    """)
    for i in range(18): a(f"v_mov_b32 v{QW+i}, 0")
    for i in range(16): a(f"v_mov_b32 v{O+i}, 0")
    pf.stamp(2)
    a("s_waitcnt vmcnt(9)")
    pf.stamp(3)
    a(f"v_dot2_f32_bf16 v{T0}, v{QMv}, v{QMv}, 0")
    for i in range(1, 4): a(f"v_dot2_f32_bf16 v{T0}, v{QMv+i}, v{QMv+i}, v{T0}")
    for sh in (8, 4, 2, 1):
        for i in range(3): a(f"v_max_f32_dpp v{P+i}, v{P+i}, v{P+i} row_ror:{sh} row_mask:0xf bank_mask:0xf")
    a(f"v_mov_b32 v{T1}, v{T0}\nv_permlane32_swap_b32 v{T0}, v{T1}\nv_add_f32 v{T0}, v{T0}, v{T1}")
    a(f"v_dot2_f32_bf16 v{T0}, v{QTL}, v{QTL}, v{T0}")
    for i in range(3):
        a(f"v_mov_b32 v{P+4+i}, v{P+i}")
    for i in range(3):
        a(f"v_permlane32_swap_b32 v{P+i}, v{P+4+i}")
    for i in range(3):
        a(f"v_max_f32 v{P+i}, v{P+i}, v{P+4+i}\nv_mov_b32 v{P+4+i}, v{P+i}")
    for i in range(3):
        a(f"v_permlane16_swap_b32 v{P+i}, v{P+4+i}")
    for i in range(3):
        a(f"v_max_f32 v{P+i}, v{P+i}, v{P+4+i}")
    a(f"""
    v_add_f32 v{P}, v{P}, v{P+1}
    v_add_f32 v{P}, v{P}, v{P+2}
    v_mul_f32 v{T0}, v{T0}, v{P}
    v_sqrt_f32 v{T0}, v{T0}
    v_cmp_gt_u32 vcc, 32, v{LANE}
    v_mul_f32 v{T0}, {f32(1.0 + 1.0/64)}, v{T0}
    v_cndmask_b32 v{QW+2}, 0, v{QTL}, vcc
    v_cndmask_b32 v{QW+7}, 0, v{QTL}, vcc
    v_cndmask_b32 v{QW+10}, v{QTL}, v{QW}, vcc
    v_cndmask_b32 v{QW+15}, v{QTL}, v{QW}, vcc
    v_mov_b32 v{T1}, {f32(BOUND_T)}
    v_cmp_nle_f32 vcc, v{T0}, v{T1}
    s_cmp_eq_u64 vcc, 0
    s_cbranch_scc1 {name}_fast
    """)
    KB = [O, O + 4, O + 8, O + 12, V0, V1, P, P + 4]
    a(f"""
    v_mov_b32 v{T0}, 0xff800000
    s_mov_b32 s17, s{sBase}
    s_mov_b32 s19, 8
    """)
    a.label(f"{name}_fb")
    a(f"s_add_u32 s20, s17, 4096\ns_add_u32 s21, s17, 8192")
    a(f"buffer_load_dwordx4 {vr(KT,4)}, v{VL16}, s[{sWS}:{sWS+3}], s21 offen")
    for tt in range(8):
        a(f"buffer_load_dwordx4 {vr(KB[tt],4)}, v{VL16}, s[{sWS}:{sWS+3}], s{17 if tt < 4 else 20} offen offset:{1024*(tt%4)}")
    a("s_waitcnt vmcnt(0)")
    for tt in range(8):
        s = SB(tt)
        a(f"v_mfma_f32_32x32x16_bf16 {vr(s,16)}, {vr(KB[tt],4)}, {vr(QMv,4)}, 0")
        a(f"v_mfma_f32_32x32x16_bf16 {vr(s,16)}, {vr(KT,4)}, {vr(QW+WIN[tt],4)}, {vr(s,16)}")
        for i in range(8): a(f"v_max3_f32 v{T0}, v{s+2*i}, v{s+2*i+1}, v{T0}")
    a(f"""
    s_add_u32 s17, s17, {KV_CHUNK}
    s_sub_u32 s19, s19, 1
    s_cmp_lg_u32 s19, 0
    s_cbranch_scc1 {name}_fb
    v_mov_b32 v{T1}, v{T0}
    v_permlane32_swap_b32 v{T0}, v{T1}
    v_max_f32 v{T0}, v{T0}, v{T1}
    """)
    for i in range(16): a(f"v_mov_b32 v{O+i}, 0")
    a.label(f"{name}_fast")
    a.flush(4)
    for i in range(16): a(f"v_sub_f32 v{C+i}, 0, v{T0}")
    lq = LQ(a)
    def koff(i): return ((i // 8) % 2) * KV_STAGE + (i % 8) * 1024
    def voff(i, m): return ((i // 8) % 2) * KV_STAGE + (i % 8) * KV_VT + m * 2 * KV_VG
    VK2 = 120; VV2 = 121
    a(f"v_add_u32 v{VK2}, {2*KV_STAGE}, v{VK}\nv_add_u32 v{VV2}, {2*KV_STAGE}, v{VV}")
    rk = lambda i: VK if i < 16 else VK2
    rv = lambda i: VV if i < 16 else VV2
    def rdK(i): lq.issue(("K", i), f"ds_read_b128 {vr(KF,4)}, v{rk(i)} offset:{koff(i)}")
    def rdT(i): lq.issue(("T", i // 8), f"ds_read_b128 {vr(KT,4)}, v{rk(i)} offset:{((i//8)%2)*KV_STAGE + KV_KT}")
    def rdV(i, m): lq.issue(("V", i, m), f"ds_read_b128 {vr(V1 if m else V0,4)}, v{rv(i)} offset:{voff(i,m)}")
    def mS1(i): a(f"v_mfma_f32_32x32x16_bf16 {vr(SB(i),16)}, {vr(KF,4)}, {vr(QMv,4)}, {vr(C,16)}")
    def mS2(i): a(f"v_mfma_f32_32x32x16_bf16 {vr(SB(i),16)}, {vr(KT,4)}, {vr(QW+WIN[i%8],4)}, {vr(SB(i),16)}")
    vw = {0: 6, 1: 4, 2: 2, 3: 0}
    pf.stamp(4)
    a(f"s_waitcnt vmcnt({vw[0]})\ns_barrier")
    pf.stamp(5)
    rdK(0); rdT(0); rdV(0, 0); rdV(0, 1)
    lq.wait(("K", 0)); mS1(0); rdK(1); lq.wait(("T", 0)); mS2(0)
    N = 32
    pfl = [(30, D*D*2, PFV+5, 19, 0)] + [(lo, D*F*2, VL16, 18, off) for lo in (24, 26, 28) for off in (0, 272)]
    for i in range(N):
        s = SB(i)
        ex = lambda lo: [a(f"v_exp_f32 v{s+r}, v{s+r}") for r in range(lo, lo + 4)]
        cv = lambda m: [a(f"v_cvt_pk_bf16_f32 v{P+4*m+r}, v{s+8*m+2*r}, v{s+8*m+2*r+1}") for r in range(4)]
        if i == PF_AT:
            a(f"s_lshl_b32 s17, s2, 4\ns_add_u32 s17, s17, s{sWave}\ns_mul_i32 s18, s17, 1296\ns_mul_i32 s19, s17, 176")
            a(f"s_mul_i32 s20, s17, 1728\ns_add_u32 s20, s20, {PART}\nv_min_u32 v{PFV+5}, 160, v{VL16}")
            for r in range(4): a(f"v_mov_b32 v{PFV+r}, -1")
            a(f"buffer_store_dwordx4 {vr(PFV,4)}, v{VL16}, s[{sWS}:{sWS+3}], s20 offen sc1")
            a(f"buffer_store_dwordx4 {vr(PFV,4)}, v{VL16}, s[{sWS}:{sWS+3}], s20 offen offset:704 sc1")
            for k in vw: vw[k] += 2
        if i > PF_AT and (i - PF_AT) % PF_STEP == 0 and pfl:
            lo, size, pvo, pso, off = pfl.pop(0)
            srd(a, 32, lo, size)
            a(f"buffer_load_dwordx4 {vr(PFV,4)}, v{pvo}, s[32:35], s{pso} offen offset:{off}")
            for k in vw: vw[k] += 1
        if i % 8 == 6 and i + 2 < N:
            pf.stamp(6 + 2 * (i // 8))
            a(f"s_waitcnt vmcnt({vw[i//8+1]})\ns_barrier")
            pf.stamp(7 + 2 * (i // 8))
        if i + 1 < N:
            lq.wait(("K", i + 1)); mS1(i + 1)
            if i + 2 < N: rdK(i + 2)
        ex(0)
        if i + 1 < N:
            lq.wait(("T", (i + 1) // 8)); mS2(i + 1)
            if (i + 1) % 8 == 7 and i + 2 < N: rdT(i + 2)
        ex(4); cv(0); ex(8)
        lq.wait(("V", i, 0))
        a(f"v_mfma_f32_32x32x16_bf16 {vr(O,16)}, {vr(V0,4)}, {vr(P,4)}, {vr(O,16)}")
        if i + 1 < N: rdV(i + 1, 0)
        ex(12); cv(1)
        lq.wait(("V", i, 1))
        a(f"v_mfma_f32_32x32x16_bf16 {vr(O,16)}, {vr(V1,4)}, {vr(P+4,4)}, {vr(O,16)}")
        if i + 1 < N: rdV(i + 1, 1)
    pf.stamp(12)
    a(f"""
    s_and_b32 s17, s{sWave}, 7
    s_mul_i32 s17, s17, 3072
    v_add_u32 v{T0}, s17, v{VL16}
    s_barrier
    s_cmp_eq_u32 s{sKS}, 0
    s_cbranch_scc1 {name}_fin
    ds_write_b128 v{T0}, {vr(O,4)}
    ds_write_b128 v{T0}, {vr(O+4,4)} offset:1024
    ds_write_b128 v{T0}, {vr(O+8,4)} offset:2048
    s_waitcnt lgkmcnt(0)
    s_barrier
    s_branch {name}_done
    """)
    a.label(f"{name}_fin")
    a(f"""
    s_barrier
    ds_read_b128 {vr(8,4)}, v{T0}
    ds_read_b128 {vr(12,4)}, v{T0} offset:1024
    ds_read_b128 {vr(16,4)}, v{T0} offset:2048
    s_lshr_b32 s17, s{sHead}, 1
    s_lshl_b32 s17, s17, 10
    s_and_b32 s18, s{sHead}, 1
    s_lshl_b32 s18, s18, 9
    s_add_u32 s17, s17, s18
    s_mul_i32 s18, s{sTq}, {2*18432}
    s_add_u32 s18, s18, {OF}
    s_add_u32 s17, s17, s18
    v_bfe_u32 v{T1}, v{LANE}, 4, 1
    v_mul_u32_u24 v{T1}, 18432, v{T1}
    v_and_b32 v{T2}, 15, v{LANE}
    v_lshl_add_u32 v{T1}, v{T2}, 4, v{T1}
    v_lshrrev_b32 v{T2}, 5, v{LANE}
    v_lshl_add_u32 v{T2}, v{T2}, 8, v{T1}
    s_lshr_b32 s19, s{sHead}, 2
    s_lshl_b32 s19, s19, 8
    s_and_b32 s20, s{sHead}, 3
    s_lshl_b32 s20, s20, 2
    s_add_u32 s19, s19, s20
    s_add_u32 s19, s19, 16384
    s_add_u32 s19, s19, s18
    s_waitcnt lgkmcnt(0)
    """)
    for i in range(11): a(f"v_add_f32 v{O+i}, v{O+i}, v{8+i}")
    a(f"""
    v_mov_b32 v{T3}, v{O+10}
    v_permlane32_swap_b32 v{O+10}, v{T3}
    v_rcp_f32 v{T3}, v{O+10}
    """)
    for i in range(10): a(f"v_mul_f32 v{O+i}, v{O+i}, v{T3}")
    for i in range(5): a(f"v_cvt_pk_bf16_f32 v{P+i}, v{O+2*i}, v{O+2*i+1}")
    a(f"""
    buffer_store_dwordx4 {vr(P,4)}, v{T2}, s[{sWS}:{sWS+3}], s17 offen
    s_mov_b32 exec_hi, 0
    buffer_store_dword v{P+4}, v{T1}, s[{sWS}:{sWS+3}], s19 offen
    """)
    a.label(f"{name}_done")
    pf.stamp(13)
    pf.dump(sWS, sWave, 8)
    a.label(f"{name}_end")
    a("s_endpgm")
    return dict(name=name, grid=256, block=1024, lds=K2_LDS, vgpr=128, accum=128, sgpr=100 if Prof.enabled else 40)
```

```python
import re

TRANS = ("v_exp_f32", "v_log_f32", "v_rcp_f32", "v_rsq_f32", "v_sqrt_f32", "v_sin_f32", "v_cos_f32",
         "v_exp_f16", "v_rcp_f16", "v_rcp_iflag_f32")

def regs_of(tok):
    tok = tok.strip()
    neg = tok.lstrip("-")
    m = re.fullmatch(r"\|?(?:abs\()?([vas])(\d+)\)?\|?", neg)
    if m: return [(m.group(1), int(m.group(2)))]
    m = re.fullmatch(r"([vas])\[(\d+):(\d+)\]", neg)
    if m: return [(m.group(1), i) for i in range(int(m.group(2)), int(m.group(3)) + 1)]
    if neg == "vcc": return [("s", 106), ("s", 107)]
    if neg == "vcc_lo": return [("s", 106)]
    if neg == "vcc_hi": return [("s", 107)]
    if neg == "exec": return [("s", 126), ("s", 127)]
    if neg == "m0": return [("s", 124)]
    return []

class Ins:
    __slots__ = ("text", "op", "kind", "wr", "rd", "passes", "srcC", "srcAB", "states", "dpp", "store_data", "lds_dma", "is_trans", "sdwa", "dotAB")
    def __init__(self, text):
        self.text = text
        t = text.split(";")[0].strip()
        parts = t.split(None, 1)
        self.op = op = parts[0]
        rest = parts[1] if len(parts) > 1 else ""
        ops = []; cur = ""; depth = 0
        for ch in rest:
            if ch == "[": depth += 1
            if ch == "]": depth -= 1
            if ch == "," and depth == 0: ops.append(cur.strip()); cur = ""
            else: cur += ch
        if cur.strip(): ops.append(cur.strip())
        mods = ""
        if ops:
            sp = ops[-1].split(None, 1)
            ops[-1] = sp[0]
            if len(sp) > 1: mods = sp[1]
        self.wr = set(); self.rd = set(); self.passes = 0; self.srcC = set(); self.srcAB = set()
        self.states = 1; self.dpp = False; self.store_data = set(); self.lds_dma = False
        self.is_trans = False; self.sdwa = "sdwa" in op or "op_sel" in mods
        R = [regs_of(o) for o in ops]
        self.dotAB = (set(R[1]) | set(R[2])) if op.startswith("v_dot") else set()
        if op == "s_nop":
            self.kind = "nop"; self.states = int(ops[0], 0) + 1
        elif op.startswith("v_mfma"):
            self.kind = "mfma"
            self.wr = set(R[0]); self.srcAB = set(R[1]) | set(R[2]); self.srcC = set(R[3]); self.rd = self.srcAB | self.srcC
            self.passes = 8 if "32x32x16" in op else 4 if "16x16x32" in op else 2 if "4x4x4" in op else 16
        elif op.startswith("v_"):
            self.kind = "valu"
            self.dpp = "_dpp" in op or "row_" in mods or "quad_perm" in mods
            self.is_trans = any(op.startswith(x) for x in TRANS)
            if op.startswith("v_permlane"):
                self.wr = set(R[0]) | set(R[1]); self.rd = set(self.wr)
            elif op.startswith("v_cmp"):
                self.wr = set(R[0]);
                for r in R[1:]: self.rd |= set(r)
                if op.startswith("v_cmpx"): self.wr |= set(regs_of("exec"))
            elif op.startswith(("v_add_co", "v_sub_co", "v_addc_co", "v_subb_co", "v_subrev_co", "v_mad_u64")):
                self.wr = set(R[0]) | set(R[1])
                for r in R[2:]: self.rd |= set(r)
            else:
                self.wr = set(R[0])
                for r in R[1:]: self.rd |= set(r)
                if op.startswith(("v_fmac", "v_dot2c", "v_pk_fmac", "v_writelane")) or "UNUSED_PRESERVE" in mods or self.dpp:
                    self.rd |= set(R[0])
                if op.startswith("v_cndmask") and len(ops) == 3: self.rd |= set(regs_of("vcc"))
        elif op.startswith("ds_"):
            self.kind = "ds"
            if op.startswith(("ds_read", "ds_bpermute", "ds_permute", "ds_swizzle")) or "_rtn" in op:
                self.wr = set(R[0])
                for r in R[1:]: self.rd |= set(r)
            else:
                for r in R: self.rd |= set(r)
        elif op.startswith(("buffer_", "global_")):
            self.kind = "vmem"
            lds = " lds" in (" " + mods) or "_lds_" in op
            self.lds_dma = lds
            if lds:
                for r in R: self.rd |= set(r)
                self.rd |= set(regs_of("m0"))
            elif "load" in op:
                self.wr = set(R[0])
                for r in R[1:]: self.rd |= set(r)
            elif "atomic" in op and "sc0" in mods and op.startswith("global"):
                self.wr = set(R[0])
                for r in R[1:]: self.rd |= set(r)
            else:
                for r in R: self.rd |= set(r)
                if "atomic" in op and "sc0" in mods: self.wr = set(R[0])
                if op.startswith("buffer_store") and ("x4" in op or "x3" in op): self.store_data = set(R[0])
                if op.startswith("global_store") and ("x4" in op or "x3" in op): self.store_data = set(R[1])
        elif op.startswith("s_"):
            self.kind = "salu"
            if op.startswith(("s_cmp", "s_cbranch", "s_branch", "s_waitcnt", "s_barrier", "s_setprio", "s_sleep", "s_endpgm", "s_bitcmp")):
                for r in R: self.rd |= set(r)
            else:
                if R: self.wr = set(R[0])
                for r in R[1:]: self.rd |= set(r)
                if "saveexec" in op: self.wr |= set(regs_of("exec"))
        else:
            self.kind = "other"

XDL_D_VALU = {2: 5, 4: 8, 8: 12, 16: 20}
XDL_D_AB = {2: 5, 4: 8, 8: 12, 16: 20}
XDL_D_C_OVERLAP = {2: 4, 4: 6, 8: 10, 16: 18}
XDL_C_WAR = {2: 1, 4: 3, 8: 7, 16: 15}

def need(p, c):
    n = 0
    vw = {r for r in p.wr if r[0] in "va"}
    sw = {r for r in p.wr if r[0] == "s"}
    if p.kind == "valu" and p.op.startswith("v_dot"):
        if c.op != p.op:
            if vw & (c.rd | c.wr): n = max(n, 3)
        elif vw & c.dotAB: n = max(n, 3)
    if p.kind == "valu":
        if c.kind == "mfma" and vw & c.rd: n = max(n, 2)
        if c.kind == "valu":
            if c.dpp and vw & c.rd: n = max(n, 2)
            if c.op.startswith("v_permlane") and vw & c.rd: n = max(n, 2)
            if c.op.startswith(("v_readlane", "v_readfirstlane")) and vw & c.rd: n = max(n, 1)
            if p.is_trans and not c.is_trans and vw & c.rd: n = max(n, 1)
            if p.sdwa and vw & (c.rd | c.wr): n = max(n, 1)
            if sw & c.rd: n = max(n, 4 if c.op.startswith(("v_readlane", "v_writelane")) else 2)
            if (("s", 126) in sw) and (c.dpp): n = max(n, 5)
            if (("s", 126) in sw) and c.op.startswith(("v_readlane", "v_readfirstlane", "v_writelane", "v_permlane")): n = max(n, 4)
        if c.kind == "mfma" and ("s", 126) in sw: n = max(n, 4)
        if c.kind == "vmem" and sw & c.rd: n = max(n, 5)
        if c.kind == "salu" and sw & c.rd: n = max(n, 1)
    if p.kind == "mfma":
        if c.kind == "mfma":
            if p.wr & c.srcAB: n = max(n, XDL_D_AB[p.passes])
            if p.wr & c.srcC:
                if p.wr == c.srcC and p.passes == c.passes: n = max(n, 2 if p.passes == 2 else 0)
                else: n = max(n, XDL_D_C_OVERLAP[p.passes])
            elif p.wr & c.wr: n = max(n, XDL_D_C_OVERLAP[p.passes])
        elif c.kind in ("valu", "vmem", "ds"):
            if p.wr & (c.rd | c.wr): n = max(n, XDL_D_VALU[p.passes])
            if c.kind == "valu" and p.srcC & c.wr: n = max(n, XDL_C_WAR[p.passes])
    if p.kind == "vmem" and p.store_data:
        if c.kind == "valu" and p.store_data & c.wr: n = max(n, 2)
        elif c.kind in ("mfma", "ds", "vmem") and p.store_data & c.wr: n = max(n, 1)
    if p.kind == "salu" and ("s", 124) in p.wr and c.lds_dma: n = max(n, 1)
    return n

class Asm:
    store_mod = ""
    def __init__(self):
        self.out = []
        self.hist = []
        self.nops = 0
        self.count = 0
    def raw(self, s):
        self.out.append(s)
    def label(self, l):
        self.out.append(f"{l}:")
    def __call__(self, text):
        for line in text.strip().split("\n"):
            line = line.strip()
            if not line or line.startswith(";"):
                continue
            if line.endswith(":"):
                self.label(line[:-1]); continue
            if Asm.store_mod and line.startswith("buffer_store") and "s96" not in line and " sc" not in line:
                line = line + " " + Asm.store_mod
            c = Ins(line)
            dist = 0; req = 0
            for p in reversed(self.hist[-24:]):
                n = need(p, c)
                if n > dist: req = max(req, n - dist)
                dist += p.states
                if dist >= 20: break
            while req > 0:
                k = min(req, 16)
                nop = Ins(f"s_nop {k-1}")
                self.hist.append(nop); self.out.append(f"    s_nop {k-1}"); self.nops += 1
                req -= k
            self.hist.append(c); self.out.append("    " + line); self.count += 1
            if len(self.hist) > 64: self.hist = self.hist[-32:]
    def flush(self, n=20):
        self(f"s_nop 15\ns_nop {n-17}" if n > 16 else f"s_nop {n-1}")
    def text(self):
        return "\n".join(self.out) + "\n"

def desc(name, vgpr, sgpr=102, accum=None):
    if accum is None: accum = (vgpr + 3) // 4 * 4
    return f""".p2align 6
.amdhsa_kernel {name}
  .amdhsa_next_free_vgpr {vgpr}
  .amdhsa_next_free_sgpr {sgpr}
  .amdhsa_accum_offset {accum}
  .amdhsa_group_segment_fixed_size 0
  .amdhsa_kernarg_size 80
  .amdhsa_user_sgpr_count 2
  .amdhsa_user_sgpr_kernarg_segment_ptr 1
  .amdhsa_system_sgpr_workgroup_id_x 1
.end_amdhsa_kernel
"""

def vr(b, n): return f"v[{b}:{b+n-1}]" if n > 1 else f"v{b}"
def ar(b, n): return f"a[{b}:{b+n-1}]" if n > 1 else f"a{b}"
def sr(b, n): return f"s[{b}:{b+n-1}]" if n > 1 else f"s{b}"
def f32(x):
    import struct
    return "0x%08x" % struct.unpack("<I", struct.pack("<f", x))[0]

PROF_BASE = 0x3800000
class Prof:
    enabled = False
    def __init__(self, a, kidx): self.a = a; self.k = kidx; self.n = 0
    def start(self):
        if not Prof.enabled: return
        self.a("s_memrealtime s[64:65]\ns_memtime s[66:67]"); self.n = 2
    def stamp(self, i):
        if not Prof.enabled: return
        self.a(f"s_memtime s[{64+2*i}:{65+2*i}]"); self.n = max(self.n, i + 1)
    def dump(self, srd, swave, vt, drain=True):
        if not Prof.enabled: return
        a = self.a
        if drain: a("s_waitcnt vmcnt(0)")
        a(f"s_memtime s[92:93]\ns_memrealtime s[94:95]\ns_waitcnt lgkmcnt(0)")
        a(f"s_lshl_b32 s96, s2, 4\ns_add_u32 s96, s96, s{swave}\ns_lshl_b32 s96, s96, 7\ns_add_u32 s96, s96, {PROF_BASE + self.k * 0x100000}")
        a(f"s_mov_b64 exec, 1\nv_mov_b32 v{vt+2}, 0")
        for i in range(16):
            a(f"v_mov_b32 v{vt}, s{64+2*i}\nv_mov_b32 v{vt+1}, s{65+2*i}\nbuffer_store_dwordx2 v[{vt}:{vt+1}], v{vt+2}, s[{srd}:{srd+3}], s96 offen offset:{8*i}")


CODE_PF = True
def code_pf(a, name, sWave, wave, s0, vt, vd, nchunk, end=None):
    if not CODE_PF: return
    end = end or f"{name}_end"
    a(f"""
    s_cmp_lg_u32 s{sWave}, {wave}
    s_cbranch_scc1 {name}_cpf
    s_getpc_b64 s[{s0}:{s0+1}]
    """)
    a.label(f"{name}_pc")
    a(f"""
    s_lshr_b32 s{s0+2}, s2, 3
    s_and_b32 s{s0+2}, s{s0+2}, {nchunk-1}
    s_lshl_b32 s{s0+2}, s{s0+2}, 13
    v_and_b32 v{vt}, 63, v0
    v_lshlrev_b32 v{vt}, 7, v{vt}
    v_add_u32 v{vt}, s{s0+2}, v{vt}
    v_min_u32 v{vt}, {end}-{name}_pc, v{vt}
    global_load_dword v{vd}, v{vt}, s[{s0}:{s0+1}]
    """)
    a.label(f"{name}_cpf")
```

```python
from asmlib import *
from k2 import LQ

EXP = {}
STG = 34816
BOFF = 18432
NSLOT = 4
RING = NSLOT * STG

class VQ8:
    ALL = frozenset(range(8))
    def __init__(self, a, waves=None):
        self.a = a; self.waves = sorted(waves if waves is not None else range(8)); self.q = {w: [] for w in self.waves}
    def issue(self, tag, text, waves=None):
        self.a(text)
        for w in self.waves:
            if waves is None or w in waves: self.q[w].append(tag)
    def wait(self, *tags, extra=""):
        best = None
        for w in self.waves:
            q = self.q[w]
            idx = [i for i, t in enumerate(q) if t in tags]
            if idx:
                n = len(q) - 1 - max(idx)
                best = n if best is None else min(best, n)
        if best is None:
            if extra: self.a(f"s_waitcnt {extra}")
            return
        best = min(best, 63)
        for w in self.waves: self.q[w] = self.q[w][len(self.q[w]) - min(best, len(self.q[w])):]
        self.a(f"s_waitcnt vmcnt({best}) {extra}".strip())
    def snap(self): return {w: list(q) for w, q in self.q.items()}
    def restore(self, s): self.q = {w: list(q) for w, q in s.items()}

def w_voffsets(a, VD, pitch, T0, T1, T2, T3):
    for i in range(3):
        a(f"""
        v_add_u32 v{T0}, {512*i}, v0
        v_mul_u32_u24 v{T1}, 3641, v{T0}
        v_lshrrev_b32 v{T1}, 16, v{T1}
        v_mul_u32_u24 v{T2}, 18, v{T1}
        v_sub_u32 v{T2}, v{T0}, v{T2}
        v_and_b32 v{T0}, 0x63, v{T1}
        v_bfe_u32 v{T3}, v{T1}, 2, 2
        v_lshl_or_b32 v{T0}, v{T3}, 3, v{T0}
        v_bfe_u32 v{T3}, v{T1}, 4, 1
        v_lshl_or_b32 v{T0}, v{T3}, 2, v{T0}
        v_mul_u32_u24 v{T0}, {pitch}, v{T0}
        v_lshl_add_u32 v{VD+i}, v{T2}, 4, v{T0}
        """)

class Ring:
    def __init__(self, a, name, vq, VD, VBD, sW, sB, sWo, sB0, sB1, sM0, sWave, wstep, bstep):
        self.__dict__.update(locals()); self.lbl = 0
    def ops(self, st, tagp=""):
        a, vq = self.a, self.vq
        base = (st % NSLOT) * STG
        ops = []
        def wop(i):
            def f():
                if i == 2:
                    if not any(w < 2 for w in vq.waves):
                        a(f"s_add_u32 s{self.sWo}, s{self.sWo}, {self.wstep}"); return
                    self.lbl += 1
                    a(f"s_cmp_ge_u32 s{self.sWave}, 2\ns_cbranch_scc1 {self.name}_{tagp}sk{self.lbl}")
                a(f"s_add_u32 m0, s{self.sM0}, {base + i*8192}")
                vq.issue(("S", st), f"buffer_load_dwordx4 v{self.VD+i}, s[{self.sW}:{self.sW+3}], s{self.sWo} offen lds", waves={0, 1} if i == 2 else None)
                if i == 2:
                    a.label(f"{self.name}_{tagp}sk{self.lbl}")
                    a(f"s_add_u32 s{self.sWo}, s{self.sWo}, {self.wstep}")
            return f
        def bop(i):
            def f():
                s = self.sB1 if i else self.sB0
                a(f"s_add_u32 m0, s{self.sM0}, {base + BOFF + i*8192}")
                vq.issue(("S", st), f"buffer_load_dwordx4 v{self.VBD}, s[{self.sB}:{self.sB+3}], s{s} offen lds")
                a(f"s_add_u32 s{s}, s{s}, {self.bstep}")
            return f
        if st >= 4:
            if EXP.get("nowdma") and EXP.get("nobdma"): return []
            if EXP.get("nowdma"): return [bop(0), bop(1)]
            if EXP.get("nobdma"): return [wop(0), wop(1), wop(2)]
        return [wop(0), bop(0), wop(1), bop(1), wop(2)]

def main_loop(a, vq, ring, NS, tiles, waddr, VB, WF, BFR, ACC, swap=False, extra=None, stamp=None, tagp="", pre=NSLOT):
    lq = LQ(a)
    nt = len(tiles)
    def reads(s):
        st, h = s // 2, s % 2
        slot = st % NSLOT
        o = (slot % 2) * STG
        lst = [(("B", s, b), f"ds_read_b128 {vr(BFR(s%2,b),4)}, v{VB[h][slot//2]} offset:{o + BOFF + b*2048}") for b in range(2)]
        if EXP.get("nob") and s >= 2: lst = []
        for ti, j in enumerate(tiles):
            r, off = waddr(j, slot // 2)
            for hb in range(2):
                if EXP.get("halfw") and ti >= 2 and s >= 2: continue
                if EXP.get("now") and s >= 2: continue
                lst.append((("W", s, ti), f"ds_read_b64_tr_b16 {vr(WF(s%2,ti)+2*hb,2)}, v{r} offset:{o + h*9216 + hb*4608 + off}"))
        return lst
    if EXP.get("prio") and nt == EXP["prio"]: a("s_setprio 2")
    for t, r in reads(0): lq.issue(t, r)
    dma = [(st, f) for st in range(pre, NSLOT) for f in ring.ops(st, tagp)]
    for s in range(2 * NS):
        st, h = s // 2, s % 2
        if h == 1 and st + 1 < NS:
            while dma and dma[0][0] <= st + 1: dma.pop(0)[1]()
            vq.wait(("S", st + 1))
            if not (EXP.get("nobar") and st >= 3): a("s_barrier")
            if stamp: stamp(st)
            if st >= 1 and st + 3 < NS: dma += [(st + 3, f) for f in ring.ops(st + 3, tagp)]
        nxt = reads(s + 1) if s + 1 < 2 * NS else []
        k = 0
        for ti in range(nt):
            for b in range(2):
                lq.wait(("W", s, ti)); lq.wait(("B", s, b))
                w = vr(WF(s % 2, ti), 4); x = vr(BFR(s % 2, b), 4); acc = vr(ACC(ti, b), 4)
                c = "0" if s == 0 else acc
                a(f"v_mfma_f32_16x16x32_bf16 {acc}, {x}, {w}, {c}" if swap else f"v_mfma_f32_16x16x32_bf16 {acc}, {w}, {x}, {c}")
                for _ in range(2):
                    if nxt: lq.issue(*nxt.pop(0))
                if dma and (k % 3 == 1 or (len(dma) > 5 and k % 2 == 0)): dma.pop(0)[1]()
                if extra: extra(s, k, lq)
                k += 1
        while nxt: lq.issue(*nxt.pop(0))
    if EXP.get("prio"): a("s_setprio 0")
    assert not dma
    return lq
```

```python
from asmlib import *
from layout import *

def srd(a, d, lo, size):
    a(f"s_mov_b32 s{d}, s{lo}\ns_mov_b32 s{d+1}, s{lo+1}\ns_mov_b32 s{d+2}, {size}\ns_mov_b32 s{d+3}, 0x00020000")

def red_rows_add(a, v, t):
    a(f"v_mov_b32 v{t}, v{v}\nv_permlane32_swap_b32 v{v}, v{t}\nv_add_f32 v{v}, v{v}, v{t}")
    a(f"v_mov_b32 v{t}, v{v}\nv_permlane16_swap_b32 v{v}, v{t}\nv_add_f32 v{v}, v{v}, v{t}")

from gcore import *

K1_NAUX = 64
S0 = 2
PRE = 2
TOUCH = [1, 0]
K1_GRID = 192 + K1_NAUX
K1_CSP = RING
K1_ST = K1_CSP + 4 * 576
K1_LDS = K1_ST + 1024

def gen_k1(a, name):
    LANE = 1; VT = 2; VG = 3; VD = 4; VBD = 7; VA = 8; VZ = 10; VBr = 12
    T0, T1, T2, T3 = 16, 17, 18, 19
    SA = 20; U = 24
    ACC = lambda ti, b: 28 + (ti * 2 + b) * 4
    WF = lambda buf, ti: 68 + (buf * 5 + ti) * 4
    BFR = lambda buf, b: 108 + (buf * 2 + b) * 4
    CSA = lambda ti: 124 + 4 * ti
    ONES = 144
    CSV = 148; TP = 168
    sX, sW, sWS = 8, 12, 16
    sWave, sMB, sNB, sT, sONE, sTG, sNH, sWo, sB0, sB1, sM0 = 20, 21, 22, 23, 24, 36, 37, 38, 39, 40, 41
    a.raw(f".p2align 8\n{name}:")
    pf = Prof(a, 0)
    a(f"s_cmp_ge_u32 s2, {K1_GRID}\ns_cbranch_scc1 {name}_end")
    pf.start()
    a(f"""
    s_load_dwordx4 s[4:7], s[0:1], 0
    s_load_dwordx2 s[28:29], s[0:1], 16
    s_load_dwordx2 s[30:31], s[0:1], 72
    v_lshrrev_b32 v{T0}, 6, v0
    v_and_b32 v{LANE}, 63, v0
    v_readfirstlane_b32 s{sWave}, v{T0}
    v_and_b32 v{VT}, 15, v0
    v_bfe_u32 v{VG}, v0, 4, 2
    s_mov_b32 s{sONE}, 0x3f803f80
    s_cmp_ge_u32 s2, 192
    s_cbranch_scc1 {name}_aux
    """)
    code_pf(a, name, sWave, 7, 44, T0, TP + 2, 8)
    a(f"""
    s_and_b32 s25, s2, 7
    s_lshr_b32 s26, s2, 3
    s_lshr_b32 s{sMB}, s25, 1
    s_lshl_b32 s{sMB}, s{sMB}, 2
    s_and_b32 s42, s26, 3
    s_add_u32 s{sMB}, s{sMB}, s42
    s_and_b32 s{sNB}, s25, 1
    s_mul_i32 s{sNB}, s{sNB}, 6
    s_lshr_b32 s43, s26, 2
    s_add_u32 s{sNB}, s{sNB}, s43
    s_and_b32 s{sTG}, s{sWave}, 3
    s_lshr_b32 s{sNH}, s{sWave}, 2
    s_lshl_b32 s{sT}, s{sMB}, 2
    s_add_u32 s{sT}, s{sT}, s{sTG}
    s_mul_i32 s{sWo}, s{sNB}, 288
    s_lshl_b32 s25, s{sMB}, 4
    s_add_u32 s25, s25, s{sWave}
    s_mul_i32 s{sB0}, s25, {8*D*2}
    s_add_u32 s{sB1}, s{sB0}, {64*D*2}
    s_lshl_b32 s{sM0}, s{sWave}, 10
    v_lshrrev_b32 v{T0}, 3, v{LANE}
    v_and_b32 v{T1}, 7, v{LANE}
    v_xor_b32 v{T1}, v{T1}, v{T0}
    v_mul_u32_u24 v{T0}, {D*2}, v{T0}
    v_lshl_add_u32 v{VBD}, v{T1}, 4, v{T0}
    """)
    w_voffsets(a, VD, 3 * D * 2, T0, T1, T2, T3)
    TW, TX = TP, TP + 4
    a(f"""
    v_mul_u32_u24 v{T1}, 21846, v{LANE}
    v_lshrrev_b32 v{T1}, 16, v{T1}
    v_mul_u32_u24 v{T2}, 3, v{T1}
    v_sub_u32 v{T2}, v{LANE}, v{T2}
    v_min_u32 v{T1}, 15, v{T1}
    v_mul_u32_u24 v{T0}, {3*D*2}, v{T1}
    v_lshl_add_u32 v{TW}, v{T2}, 7, v{T0}
    s_and_b32 s25, s43, 3
    s_lshl_b32 s25, s25, 5
    s_lshl_b32 s26, s{sMB}, 7
    s_add_u32 s25, s25, s26
    v_and_b32 v{T0}, 31, v{LANE}
    v_add_u32 v{T0}, s25, v{T0}
    v_mul_u32_u24 v{T0}, {D*2}, v{T0}
    v_lshrrev_b32 v{T1}, 5, v{LANE}
    v_lshl_add_u32 v{TX}, v{T1}, 7, v{T0}
    s_mul_i32 s44, s42, {16*3*D*2}
    s_add_u32 s44, s44, s{sWo}
    s_cmp_ge_u32 s{sWave}, 3
    s_cselect_b32 s45, 1, 0
    s_mul_i32 s46, s45, 3
    s_sub_u32 s46, s{sWave}, s46
    s_lshl_b32 s25, s45, 1
    s_add_u32 s25, s25, s46
    s_mul_i32 s25, s25, {64*3*D*2}
    s_add_u32 s25, s25, s44
    s_lshl_b32 s45, s45, 8
    """)
    pf.stamp(8)
    a("s_waitcnt lgkmcnt(0)")
    pf.stamp(12)
    srd(a, sX, 4, X_BYTES); srd(a, sW, 6, D * 3 * D * 2); srd(a, sWS, 30, WS_BYTES)
    vq = VQ8(a)
    ring = Ring(a, name, vq, VD, VBD, sW, sX, sWo, sB0, sB1, sM0, sWave, 64 * 3 * D * 2, 128)
    def touch(n, pre_x, wwaves, xwaves, so_w, so_x):
        a(pre_x)
        a(f"s_cbranch_scc1 {name}_tx{n}")
        vq.issue("T", f"buffer_load_dword v{TP+1}, v{TW}, s[{sW}:{sW+3}], s{so_w} offen", waves=wwaves)
        a(f"s_branch {name}_te{n}")
        a.label(f"{name}_tx{n}")
        a(f"s_cmp_ge_u32 s43, 4\ns_cbranch_scc1 {name}_te{n}")
        vq.issue("T", f"buffer_load_dword v{TP+1}, v{TX}, s[{sX}:{sX+3}], s{so_x} offen", waves=set())
        a.label(f"{name}_te{n}")
    if TOUCH[0]:
        a(f"s_cmp_ge_u32 s{sWave}, 3\ns_cbranch_scc1 {name}_te0")
        touch(0, "s_cmp_eq_u32 s46, 2", {0, 1}, {2}, 25, 45)
    for st in range(PRE):
        for f in ring.ops(st): f()
        if st == 0:
            vq.issue("T", f"buffer_load_dword v{TP+3}, v{LANE}, s[{sWS}:{sWS+3}], 0 offen")
            pf.stamp(13)
        if st == TOUCH[1] and S0 > 2:
            a(f"s_sub_u32 s26, s{sWave}, 3\ns_cmp_ge_u32 s26, 3\ns_cbranch_scc1 {name}_te1")
            touch(1, "s_cmp_eq_u32 s46, 2", {3, 4}, {5}, 25, 45)
            if S0 == 6:
                a(f"""
                s_cmp_ge_u32 s{sWave}, 3
                s_cbranch_scc1 {name}_te2
                s_add_u32 s25, s25, {4*64*3*D*2}
                s_add_u32 s45, s45, 512
                """)
                touch(2, "s_cmp_eq_u32 s46, 2", {0, 1}, {2}, 25, 45)
    pf.stamp(2)
    for i in range(20): a(f"v_mov_b32 v{CSA(0)+i}, 0")
    for i in range(4): a(f"v_mov_b32 v{ONES+i}, s{sONE}\nv_mov_b32 v{SA+i}, 0\nv_mov_b32 v{U+i}, 0")
    a(f"""
    s_lshl_b32 s25, s{sTG}, 12
    v_lshlrev_b32 v{T0}, 7, v{VT}
    v_add_u32 v{T0}, s25, v{T0}
    v_and_b32 v{T1}, 7, v{VT}
    v_xor_b32 v{T1}, v{T1}, v{VG}
    v_lshl_add_u32 v{VBr}, v{T1}, 4, v{T0}
    v_add_u32 v{VBr+1}, {2*STG}, v{VBr}
    v_xor_b32 v{VBr+2}, 64, v{VBr}
    v_add_u32 v{VBr+3}, {2*STG}, v{VBr+2}
    v_lshrrev_b32 v{T0}, 2, v{LANE}
    v_mul_u32_u24 v{T0}, 288, v{T0}
    v_and_b32 v{T1}, 3, v{LANE}
    v_mul_u32_u24 v{T2}, 72, v{T1}
    v_add3_u32 v{VZ}, v{T2}, v{T0}, 32
    v_add_u32 v{VZ+1}, {2*STG}, v{VZ}
    v_lshrrev_b32 v{T2}, 1, v{T1}
    v_lshl_add_u32 v{T2}, v{T1}, 1, v{T2}
    s_cmp_ge_u32 s{sNB}, 8
    s_cselect_b64 vcc, -1, 0
    v_cndmask_b32 v{T2}, v{T2}, v{T1}, vcc
    v_lshl_add_u32 v{VA}, v{T2}, 3, v{T0}
    v_add_u32 v{VA+1}, {2*STG}, v{VA}
    """)
    vq.wait(("S", 0)); a("s_barrier")
    pf.stamp(3)
    a(f"""
    s_cmp_ge_u32 s{sNB}, 8
    s_cbranch_scc1 {name}_v
    s_cmp_lg_u32 s{sNH}, 0
    s_cbranch_scc1 {name}_qk1
    """)
    snap = vq.snap(); hist = list(a.hist)
    VB = [[VBr, VBr + 1], [VBr + 2, VBr + 3]]

    def chunk_off():
        a(f"""
        s_lshr_b32 s34, s{sT}, 5
        s_mul_i32 s34, s34, {KV_CHUNK}
        s_bfe_u32 s35, s{sT}, 0x20003
        s_mul_i32 s35, s35, {KV_STAGE}
        s_add_u32 s34, s34, s35
        s_and_b32 s35, s{sT}, 7
        """)

    def body(vpath, nh):
        tag = ("v" if vpath else "qk") + str(nh)
        if vpath: tiles = [0, 1, 2, 3, 4] if nh == 0 else [5, 6, 7, 8]
        else: tiles = [0, 1, 2, 3, 8] if nh == 0 else [4, 5, 6, 7]
        nt = len(tiles)
        vq2 = VQ8(a, waves=range(4 * nh, 4 * nh + 4)); vq2.restore({w: snap[w] for w in vq2.waves})
        ring.vq = vq2
        def waddr(j, st):
            if vpath: return VA + st, 32 * j
            if j < 8: return VA + st, 72 * (j // 2) + 8 * (j % 2)
            return VZ + st, 0
        def extra(s, k, lq):
            f = vr(BFR(s % 2, nh), 4)
            if k == 3: a(f"v_mfma_f32_16x16x32_bf16 {vr(SA,4)}, {vr(ONES,4)}, {f}, {vr(SA,4)}")
            if k == 5: a(f"v_mfma_f32_16x16x32_bf16 {vr(U,4)}, {f}, {f}, {vr(U,4)}")
            if k == 2 * nt - 1:
                a(f"s_cmp_lg_u32 s{sTG}, {s % 4}\ns_cbranch_scc1 {name}_{tag}cs{s}")
                for ti in range(nt):
                    a(f"v_mfma_f32_16x16x32_bf16 {vr(CSA(ti),4)}, {vr(WF(s%2,ti),4)}, {vr(ONES,4)}, {vr(CSA(ti),4)}")
                a.label(f"{name}_{tag}cs{s}")
        main_loop(a, vq2, ring, 9, tiles, waddr, VB, WF, BFR, ACC, swap=vpath, extra=extra,
                  stamp=lambda st: pf.stamp(4 + st // 2) if st % 2 == 1 else None, tagp=tag, pre=PRE)
        pf.stamp(9)
        a.flush(6)
        a(f"""
        v_and_b32 v{T1}, 1, v{VT}
        v_cmp_eq_u32 vcc, 1, v{T1}
        v_cndmask_b32 v{U}, v{U}, v{U+1}, vcc
        v_cndmask_b32 v{U+2}, v{U+2}, v{U+3}, vcc
        v_and_b32 v{T1}, 2, v{VT}
        v_cmp_eq_u32 vcc, 2, v{T1}
        v_cndmask_b32 v{U}, v{U}, v{U+2}, vcc
        v_lshrrev_b32 v{T1}, 2, v{VT}
        v_cmp_eq_u32 vcc, v{T1}, v{VG}
        v_cndmask_b32 v{SA+2}, 0, v{U}, vcc
        """)
        red_rows_add(a, SA + 2, T1)
        a(f"""
        v_mul_f32 v{SA}, {f32(1.0/D)}, v{SA}
        v_mul_f32 v{T1}, v{SA}, v{SA}
        v_mov_b32 v{T2}, {f32(1.0/D)}
        v_fma_f32 v{SA+2}, v{SA+2}, v{T2}, -v{T1}
        v_max_f32 v{SA+2}, 0, v{SA+2}
        v_add_f32 v{SA+2}, {f32(EPS)}, v{SA+2}
        v_rsq_f32 v{SA+2}, v{SA+2}
        s_mul_i32 s25, s{sTG}, 576
        v_lshlrev_b32 v{T0}, 4, v{VG}
        v_add_u32 v{T0}, s25, v{T0}
        v_add_u32 v{T0}, {K1_CSP}, v{T0}
        s_lshl_b32 s25, s{sTG}, 8
        s_add_u32 s25, s25, {K1_ST + 128*nh}
        v_lshlrev_b32 v{T3}, 3, v{VT}
        v_add_u32 v{T3}, s25, v{T3}
        """)
        if not vpath:
            a(f"""
            s_cmp_ge_u32 s{sNB}, 4
            s_cbranch_scc1 {name}_{tag}noq
            v_mul_f32 v{SA+2}, {f32(QSCALE)}, v{SA+2}
            s_cmp_lg_u32 s{sNB}, 0
            s_cbranch_scc1 {name}_{tag}noq
            s_lshl_b32 s25, s{sT}, 7
            s_add_u32 s25, s25, {MU1 + 64*nh}
            v_lshlrev_b32 v{T1}, 2, v{VT}
            buffer_store_dword v{SA}, v{T1}, s[{sWS}:{sWS+3}], s25 offen
            """)
            a.label(f"{name}_{tag}noq")
            a.flush(2)
        a(f"""
        v_mul_f32 v{SA+3}, v{SA}, v{SA+2}
        ds_write_b64 v{T3}, {vr(SA+2,2)}
        v_cmp_eq_u32 vcc, 0, v{VT}
        s_and_saveexec_b64 s[32:33], vcc
        """)
        for ti, j in enumerate(tiles):
            a(f"ds_write_b128 v{T0}, {vr(CSA(ti),4)} offset:{64*j}")
        a(f"""
        s_mov_b64 exec, s[32:33]
        s_lshl_b32 s25, s{sTG}, 8
        s_add_u32 s25, s25, {K1_ST}
        """)
        if vpath:
            a(f"""
            v_lshlrev_b32 v{T3}, 5, v{VG}
            v_add_u32 v{T3}, s25, v{T3}
            v_lshlrev_b32 v{T0}, 2, v{VT}
            v_add_u32 v{T0}, {K1_CSP}, v{T0}
            """)
        else:
            a(f"""
            v_lshlrev_b32 v{T3}, 3, v{VT}
            v_add_u32 v{T3}, s25, v{T3}
            v_lshlrev_b32 v{T0}, 4, v{VG}
            v_add_u32 v{T0}, {K1_CSP}, v{T0}
            """)
        chunk_off()
        a("s_waitcnt lgkmcnt(0)\ns_barrier")
        return tiles, tag

    PKB = WF(0, 0)
    def qk_tail(nh):
        tiles, tag = body(False, nh)
        nt = len(tiles)
        RS = BFR(0, 0)
        a(f"ds_read_b64 {vr(RS,2)}, v{T3}\nds_read_b64 {vr(RS+2,2)}, v{T3} offset:128")
        PT = 68
        stage = lambda q, ti: (CSV + 4 * ti) if q == 0 else (68 + 20 * (q - 1) + 4 * ti) if q < 3 else (TP + 4 * ti)
        for ti, j in enumerate(tiles):
            for q in range(4): a(f"ds_read_b128 {vr(stage(q,ti),4)}, v{T0} offset:{576*q + 64*j}")
        for ti in range(nt):
            a(f"s_waitcnt lgkmcnt({min(15, 4*(nt-1-ti))})")
            for i in range(4):
                a(f"""
                v_add_f32 v{stage(0,ti)+i}, v{stage(0,ti)+i}, v{stage(1,ti)+i}
                v_add_f32 v{stage(2,ti)+i}, v{stage(2,ti)+i}, v{stage(3,ti)+i}
                """)
            for i in range(4):
                a(f"v_add_f32 v{stage(0,ti)+i}, v{stage(0,ti)+i}, v{stage(2,ti)+i}")
            for b in range(2):
                for i in range(4):
                    a(f"v_mul_f32 v{U+i}, v{RS+2*b+1}, v{CSV+4*ti+i}")
                for i in range(4):
                    a(f"v_fma_f32 v{ACC(ti,b)+i}, v{ACC(ti,b)+i}, v{RS+2*b}, -v{U+i}")
        pf.stamp(10)
        NS = CSA(0)
        def pack_pair(p, b, o):
            for i in range(2):
                a(f"v_cvt_pk_bf16_f32 v{o+i}, v{ACC(2*p,b)+2*i}, v{ACC(2*p,b)+2*i+1}")
                a(f"v_cvt_pk_bf16_f32 v{o+2+i}, v{ACC(2*p+1,b)+2*i}, v{ACC(2*p+1,b)+2*i+1}")
        a(f"s_cmp_ge_u32 s{sNB}, 4\ns_cbranch_scc1 {name}_{tag}kst")
        a(f"""
        s_lshl_b32 s25, s{sNB}, 19
        s_lshl_b32 s26, s{sT}, 10
        s_add_u32 s25, s25, s26
        s_add_u32 s25, s25, {nh*4*65536}
        v_lshrrev_b32 v{T0}, 1, v{VG}
        v_lshlrev_b32 v{T0}, 16, v{T0}
        v_and_b32 v{T1}, 1, v{VG}
        v_lshl_add_u32 v{T0}, v{T1}, 9, v{T0}
        v_lshl_add_u32 v{T0}, v{VT}, 4, v{T0}
        """)
        for p in range(2):
            for b in range(2):
                o = PKB + 4 * (p * 2 + b)
                pack_pair(p, b, o)
                a(f"buffer_store_dwordx4 {vr(o,4)}, v{T0}, s[{sWS}:{sWS+3}], s25 offen offset:{256*b}")
            if p == 0: a(f"s_add_u32 s25, s25, {2*65536}")
        if nh == 0:
            a(f"""
            s_lshl_b32 s25, s{sNB}, 16
            s_lshl_b32 s26, s{sT}, 7
            s_add_u32 s25, s25, s26
            s_add_u32 s25, s25, {QT}
            s_add_u32 s26, s25, 8192
            v_lshlrev_b32 v{T0}, 14, v{VG}
            v_lshl_add_u32 v{T0}, v{VT}, 2, v{T0}
            """)
            for b in range(2):
                o = PKB + 16 + 2 * b
                a(f"v_cvt_pk_bf16_f32 v{o}, v{ACC(4,b)}, v{ACC(4,b)+1}\nv_cvt_pk_bf16_f32 v{o+1}, v{ACC(4,b)+2}, v{ACC(4,b)+3}")
                a(f"buffer_store_dword v{o}, v{T0}, s[{sWS}:{sWS+3}], s25 offen offset:{64*b}")
                a(f"buffer_store_dword v{o+1}, v{T0}, s[{sWS}:{sWS+3}], s26 offen offset:{64*b}")
        a(f"s_branch {name}_fin")
        a.label(f"{name}_{tag}kst")
        a(f"""
        s_sub_u32 s25, s{sNB}, 4
        s_mul_i32 s25, s25, {8*KV_HEAD}
        s_add_u32 s25, s25, s34
        s_add_u32 s27, s25, {KV}
        s_lshl_b32 s26, s35, 10
        s_add_u32 s25, s27, s26
        s_add_u32 s25, s25, {nh*4*KV_HEAD}
        v_and_b32 v{T2}, 7, v{VT}
        v_lshrrev_b32 v{T3}, 3, v{VT}
        v_lshl_or_b32 v{T2}, v{T3}, 4, v{T2}
        v_lshlrev_b32 v{T2}, 4, v{T2}
        v_lshrrev_b32 v{T0}, 1, v{VG}
        v_mul_u32_u24 v{T0}, {KV_HEAD}, v{T0}
        v_and_b32 v{T1}, 1, v{VG}
        v_lshl_add_u32 v{T0}, v{T1}, 9, v{T0}
        v_add_u32 v{T0}, v{T0}, v{T2}
        """)
        for p in range(2):
            for b in range(2):
                o = PKB + 4 * (p * 2 + b)
                pack_pair(p, b, o)
                a(f"buffer_store_dwordx4 {vr(o,4)}, v{T0}, s[{sWS}:{sWS+3}], s25 offen offset:{128*b}")
                dst = NS + p if b == 0 else T1
                a(f"v_dot2_f32_bf16 v{dst}, v{o}, v{o}, 0")
                for i in range(1, 4): a(f"v_dot2_f32_bf16 v{dst}, v{o+i}, v{o+i}, v{dst}")
                if b == 1: a(f"v_max_f32 v{NS+p}, v{NS+p}, v{T1}")
            if p == 0: a(f"s_add_u32 s25, s25, {2*KV_HEAD}")
        nn = 2
        if nh == 0:
            nn = 4
            a(f"""
            s_lshr_b32 s26, s35, 2
            s_lshl_b32 s26, s26, 9
            s_add_u32 s25, s27, s26
            s_and_b32 s27, s35, 3
            s_lshl_b32 s27, s27, 2
            s_add_u32 s25, s25, s27
            s_add_u32 s25, s25, {KV_KT}
            s_add_u32 s26, s25, {KV_HEAD}
            v_mul_u32_u24 v{T0}, {2*KV_HEAD}, v{VG}
            v_add_u32 v{T0}, v{T0}, v{T2}
            """)
            for b in range(2):
                o = PKB + 16 + 2 * b
                a(f"v_cvt_pk_bf16_f32 v{o}, v{ACC(4,b)}, v{ACC(4,b)+1}\nv_cvt_pk_bf16_f32 v{o+1}, v{ACC(4,b)+2}, v{ACC(4,b)+3}")
                a(f"buffer_store_dword v{o}, v{T0}, s[{sWS}:{sWS+3}], s25 offen offset:{128*b}")
                a(f"buffer_store_dword v{o+1}, v{T0}, s[{sWS}:{sWS+3}], s26 offen offset:{128*b}")
                for i in range(2):
                    dst = NS + 2 + i if b == 0 else T1
                    a(f"v_dot2_f32_bf16 v{dst}, v{o+i}, v{o+i}, 0")
                    if b == 1: a(f"v_max_f32 v{NS+2+i}, v{NS+2+i}, v{T1}")
        for sh in (8, 4, 2, 1):
            for i in range(nn):
                a(f"v_max_f32_dpp v{NS+i}, v{NS+i}, v{NS+i} row_ror:{sh} row_mask:0xf bank_mask:0xf")
        a(f"""
        s_sub_u32 s25, s{sNB}, 4
        s_lshl_b32 s25, s25, 13
        s_lshl_b32 s26, s{sT}, 4
        s_add_u32 s25, s25, s26
        s_add_u32 s25, s25, {KMAX}
        s_add_u32 s26, s25, {4096*nh}
        v_lshrrev_b32 v{T0}, 1, v{VG}
        v_lshlrev_b32 v{T0}, 10, v{T0}
        v_and_b32 v{T1}, 1, v{VG}
        v_lshl_add_u32 v{T0}, v{T1}, 2, v{T0}
        v_lshlrev_b32 v{T1}, 11, v{VG}
        v_cmp_eq_u32 vcc, 0, v{VT}
        s_and_saveexec_b64 s[32:33], vcc
        """)
        for p in range(2):
            a(f"buffer_store_dword v{NS+p}, v{T0}, s[{sWS}:{sWS+3}], s26 offen offset:{2048*p}")
        if nh == 0:
            a(f"buffer_store_dword v{NS+2}, v{T1}, s[{sWS}:{sWS+3}], s25 offen offset:8")
            a(f"buffer_store_dword v{NS+3}, v{T1}, s[{sWS}:{sWS+3}], s25 offen offset:1032")
        a(f"s_branch {name}_fin")

    def v_tail(nh):
        tiles, tag = body(True, nh)
        nt = len(tiles)
        RR = BFR(0, 0)
        for b in range(2):
            a(f"ds_read_b128 {vr(RR+8*b,4)}, v{T3} offset:{128*b}\nds_read_b128 {vr(RR+8*b+4,4)}, v{T3} offset:{128*b+16}")
        for ti, j in enumerate(tiles):
            for q in range(4): a(f"ds_read_b32 v{CSV+4*ti+q}, v{T0} offset:{576*q + 64*j}")
        a(f"""
        s_sub_u32 s25, s{sNB}, 8
        s_mul_i32 s25, s25, {8*KV_HEAD}
        s_add_u32 s25, s25, s34
        s_mul_i32 s26, s35, {KV_VT}
        s_add_u32 s25, s25, s26
        s_add_u32 s25, s25, {KV + KV_V}
        v_mul_u32_u24 v{T3}, {KV_VG}, v{VG}
        """)
        pf.stamp(10)
        for ti, j in enumerate(tiles):
            c = CSV + 4 * ti
            ad = TP + ti
            a(f"""
            v_add_u32 v{T0}, {16*j}, v{VT}
            v_mul_u32_u24 v{T1}, 3641, v{T0}
            v_lshrrev_b32 v{T1}, 16, v{T1}
            v_mul_u32_u24 v{T2}, {KV_HEAD - 288}, v{T1}
            v_lshl_add_u32 v{T2}, v{T0}, 4, v{T2}
            v_add_u32 v{ad}, v{T2}, v{T3}
            s_waitcnt lgkmcnt({min(15, 4*(nt-1-ti))})
            v_add_f32 v{c}, v{c}, v{c+1}
            v_add_f32 v{c+2}, v{c+2}, v{c+3}
            v_add_f32 v{c}, v{c}, v{c+2}
            """)
            o = PKB + 4 * ti
            for b in range(2):
                for i in range(4): a(f"v_mul_f32 v{U+i}, v{RR+8*b+2*i+1}, v{c}")
                for i in range(4): a(f"v_fma_f32 v{ACC(ti,b)+i}, v{ACC(ti,b)+i}, v{RR+8*b+2*i}, -v{U+i}")
                for i in range(2): a(f"v_cvt_pk_bf16_f32 v{o+2*b+i}, v{ACC(ti,b)+2*i}, v{ACC(ti,b)+2*i+1}")
            a(f"buffer_store_dwordx4 {vr(o,4)}, v{ad}, s[{sWS}:{sWS+3}], s25 offen")
        if nh == 1:
            a(f"""
            v_bfe_u32 v{T0}, v{LANE}, 2, 3
            v_mul_u32_u24 v{T0}, {KV_HEAD}, v{T0}
            v_and_b32 v{T1}, 3, v{LANE}
            v_mul_u32_u24 v{T1}, {KV_VG}, v{T1}
            v_add_u32 v{T0}, v{T0}, v{T1}
            buffer_store_dwordx4 {vr(ONES,4)}, v{T0}, s[{sWS}:{sWS+3}], s25 offen offset:288
            """)
        a(f"s_branch {name}_fin")

    qk_tail(0)
    a.label(f"{name}_qk1"); a.hist = list(hist)
    qk_tail(1)
    a.label(f"{name}_v"); a.hist = list(hist)
    a(f"s_cmp_lg_u32 s{sNH}, 0\ns_cbranch_scc1 {name}_v1")
    v_tail(0)
    a.label(f"{name}_v1"); a.hist = list(hist)
    v_tail(1)

    a.label(f"{name}_aux")
    X0 = 28; SUM = SA; TMP = 104
    NTOT = 22 * (9 - S0)
    a(f"""
    s_sub_u32 s25, s2, 192
    s_lshr_b32 s26, s25, 3
    s_lshl_b32 s27, s{sWave}, 3
    s_add_u32 s27, s27, s26
    s_bfe_u32 s34, s2, 0x20001
    s_mul_i32 s34, s34, {512*D*2}
    s_and_b32 s35, s2, 1
    s_mul_i32 s35, s35, {13*128}
    v_mul_u32_u24 v{T3}, {D*2}, v{LANE}
    s_waitcnt lgkmcnt(0)
    """)
    srd(a, sX, 4, X_BYTES); srd(a, sW, 6, D * 3 * D * 2); srd(a, sWS, 30, WS_BYTES)
    for r in range((NTOT + 63) // 64):
        a(f"""
        s_cmp_ge_u32 s27, {NTOT}
        s_cbranch_scc1 {name}_he
        s_mul_i32 s36, s27, 2979
        s_lshr_b32 s36, s36, 16
        s_mul_i32 s37, s36, 22
        s_sub_u32 s37, s27, s37
        s_add_u32 s36, s36, {S0}
        s_cmp_ge_u32 s37, 8
        s_cbranch_scc1 {name}_hw{r}
        s_mul_i32 s37, s37, {64*D*2}
        s_lshl_b32 s36, s36, 7
        s_add_u32 s36, s36, s37
        s_add_u32 s36, s36, s34
        buffer_load_dword v{X0+r}, v{T3}, s[{sX}:{sX+3}], s36 offen
        s_branch {name}_hn{r}
        """)
        a.label(f"{name}_hw{r}")
        a(f"""
        s_sub_u32 s37, s37, 8
        s_lshl_b32 s37, s37, 6
        v_add_u32 v{T0}, s37, v{LANE}
        v_mul_u32_u24 v{T1}, 4682, v{T0}
        v_lshrrev_b32 v{T1}, 16, v{T1}
        v_mul_u32_u24 v{T2}, 14, v{T1}
        v_sub_u32 v{T2}, v{T0}, v{T2}
        v_mul_u32_u24 v{T1}, {3*D*2}, v{T1}
        v_lshl_add_u32 v{T1}, v{T2}, 7, v{T1}
        s_mul_i32 s36, s36, {64*3*D*2}
        s_add_u32 s36, s36, s35
        buffer_load_dword v{X0+r}, v{T1}, s[{sW}:{sW+3}], s36 offen
        """)
        a.label(f"{name}_hn{r}")
        a("s_add_u32 s27, s27, 64")
    a.label(f"{name}_he")
    if CODE_PF:
        a(f"""
        s_cmp_lg_u32 s{sWave}, 6
        s_cbranch_scc1 {name}_aux2
        s_cmp_lg_u32 s26, 7
        s_cbranch_scc1 {name}_aux2
        s_getpc_b64 s[44:45]
        """)
        a.label(f"{name}_apc")
        a(f"""
        s_and_b32 s27, s2, 7
        s_lshl_b32 s27, s27, 13
        v_lshlrev_b32 v{T0}, 7, v{LANE}
        v_add_u32 v{T0}, s27, v{T0}
        v_min_u32 v{T0}, text_end-{name}_apc, v{T0}
        global_load_dword v{T1}, v{T0}, s[44:45]
        """)
        a.label(f"{name}_aux2")
    a("s_waitcnt vmcnt(0)")
    srd(a, sW, 28, D * D * 2)
    a(f"""
    s_cmp_lg_u32 s{sWave}, 7
    s_cbranch_scc1 {name}_fin
    s_cmp_ge_u32 s25, 36
    s_cbranch_scc1 {name}_fin
    s_lshl_b32 s25, s25, 4
    v_add_u32 v{T3}, s25, v{VT}
    v_mul_u32_u24 v{T0}, {D*2}, v{T3}
    v_mul_u32_u24 v{T1}, 288, v{VG}
    v_add_u32 v{T0}, v{T0}, v{T1}
    """)
    for i in range(18):
        a(f"buffer_load_dwordx4 {vr(X0+4*i,4)}, v{T0}, s[{sW}:{sW+3}], 0 offen offset:{16*i}")
    HD, DD, SS, GG, JJ = TMP, TMP + 1, TMP + 2, TMP + 3, TMP + 4
    a(f"""
    v_mov_b32 v{SUM}, 0
    v_mul_u32_u24 v{HD}, 3641, v{T3}
    v_lshrrev_b32 v{HD}, 16, v{HD}
    v_mul_u32_u24 v{DD}, 18, v{HD}
    v_sub_u32 v{DD}, v{T3}, v{DD}
    v_lshrrev_b32 v{SS}, 1, v{HD}
    v_and_b32 v{GG}, 1, v{HD}
    v_lshlrev_b32 v{GG}, 1, v{GG}
    v_bfe_u32 v{T1}, v{DD}, 2, 1
    v_or_b32 v{GG}, v{GG}, v{T1}
    v_bfe_u32 v{JJ}, v{DD}, 3, 1
    v_lshlrev_b32 v{JJ}, 2, v{JJ}
    v_and_b32 v{T1}, 3, v{DD}
    v_or_b32 v{JJ}, v{JJ}, v{T1}
    v_cmp_le_u32 vcc, 16, v{DD}
    v_lshrrev_b32 v{T1}, 4, v{HD}
    v_add_u32 v{T1}, 16, v{T1}
    v_cndmask_b32 v{SS}, v{SS}, v{T1}, vcc
    v_bfe_u32 v{T1}, v{HD}, 2, 2
    v_cndmask_b32 v{GG}, v{GG}, v{T1}, vcc
    v_and_b32 v{T1}, 3, v{HD}
    v_lshlrev_b32 v{T1}, 1, v{T1}
    v_and_b32 v{T2}, 1, v{DD}
    v_or_b32 v{T1}, v{T1}, v{T2}
    v_cndmask_b32 v{JJ}, v{JJ}, v{T1}, vcc
    v_lshlrev_b32 v{T1}, 1, v{JJ}
    v_lshl_add_u32 v{T1}, v{GG}, 5, v{T1}
    v_lshl_add_u32 v{T1}, v{SS}, 7, v{T1}
    v_and_b32 v{T2}, 1, v{VG}
    v_lshl_add_u32 v{T3}, v{T2}, 4, v{T1}
    v_lshlrev_b32 v{T2}, 4, v{T2}
    s_waitcnt vmcnt(0)
    """)
    for i in range(72):
        a(f"v_dot2_f32_bf16 v{SUM}, v{X0+i}, s{sONE}, v{SUM}")
    red_rows_add(a, SUM, T1)
    a(f"""
    v_cvt_pk_bf16_f32 v{T0}, v{SUM}, v{SUM}
    v_and_b32 v{T1}, 0xffff0000, v{T0}
    v_sub_f32 v{T1}, v{SUM}, v{T1}
    v_cvt_pk_bf16_f32 v{TMP+8}, v{SUM}, v{T1}
    v_lshrrev_b32 v{TMP+8}, v{T2}, v{TMP+8}
    s_mov_b32 s25, {WOM}
    buffer_store_short v{TMP+8}, v{T3}, s[{sWS}:{sWS+3}], s25 offen
    """)
    a.label(f"{name}_fin")
    pf.stamp(11)
    pf.dump(sWS, sWave, 16)
    a.label(f"{name}_end")
    a("s_endpgm")
    return dict(name=name, grid=K1_GRID, block=512, lds=K1_LDS, vgpr=192, accum=192, sgpr=100 if Prof.enabled else 48)
```

```python
from asmlib import *
from layout import *
from k1 import srd

K2_LDS = KV_HEAD
BOUND_T = 40.0

class LQ:
    def __init__(self, a): self.a = a; self.q = []
    def issue(self, tag, text): self.a(text); self.q.append(tag)
    def wait(self, tag):
        if tag not in self.q: return
        i = len(self.q) - 1 - self.q[::-1].index(tag)
        n = len(self.q) - 1 - i
        self.a(f"s_waitcnt lgkmcnt({min(n,15)})")
        self.q = self.q[i + 1:]
    def clear(self): self.q = []

PF_AT = 7
PF_STEP = 2
L2PF = True
T_AT = 13; T_STEP = 2; TSL = 4
def gen_k2(a, name, prefetch=None):
    PFV = 122
    SB = lambda i: 0 + 16 * (i % 2) + 8
    C = 40; O = 56; P = 72; KF = 80; KT = 84; V0 = 88; V1 = 92; QMv = 96; QW = 100
    VK = 118; VV = 119; LANE = 1; T0 = 2; T1 = 3; T2 = 4; T3 = 5; QTL = 6; VL16 = 7
    sWS = 8; sWave = 12; sHead = 13; sTq = 14; sKS = 15; sBase = 16
    WIN = [2, 6, 0, 4, 10, 14, 8, 12]
    a.raw(f".p2align 8\n{name}:")
    pf = Prof(a, 1)
    a(f"""
    s_cmp_ge_u32 s2, 256
    s_cbranch_scc1 {name}_end
    """)
    pf.start()
    a(f"""
    s_load_dwordx2 s[4:5], s[0:1], 72
    s_load_dwordx4 s[24:27], s[0:1], 32
    s_load_dwordx2 s[28:29], s[0:1], 48
    s_load_dwordx2 s[30:31], s[0:1], 16
    s_load_dwordx2 s[40:41], s[0:1], 0
    v_lshrrev_b32 v{T0}, 6, v0
    v_and_b32 v{LANE}, 63, v0
    v_readfirstlane_b32 s{sWave}, v{T0}
    v_lshlrev_b32 v{VL16}, 4, v{LANE}
    """)
    code_pf(a, name, sWave, 15, 36, T0, PFV + 4, 2)
    a(f"""
    s_and_b32 s17, s2, 7
    s_lshr_b32 s18, s2, 3
    s_lshl_b32 s{sHead}, s17, 2
    s_lshr_b32 s19, s18, 3
    s_add_u32 s{sHead}, s{sHead}, s19
    s_and_b32 s18, s18, 7
    s_lshl_b32 s{sTq}, s18, 3
    s_and_b32 s19, s{sWave}, 7
    s_add_u32 s{sTq}, s{sTq}, s19
    s_lshr_b32 s{sKS}, s{sWave}, 3
    s_mul_i32 s{sBase}, s{sHead}, {KV_HEAD}
    s_add_u32 s{sBase}, s{sBase}, {KV}
    s_waitcnt lgkmcnt(0)
    """)
    srd(a, sWS, 4, WS_BYTES)
    a(f"""
    s_lshl_b32 s17, s{sHead}, 16
    s_lshl_b32 s18, s{sTq}, 10
    s_add_u32 s17, s17, s18
    buffer_load_dwordx4 {vr(QMv,4)}, v{VL16}, s[{sWS}:{sWS+3}], s17 offen
    s_lshl_b32 s17, s{sHead}, 13
    s_lshl_b32 s18, s{sTq}, 7
    s_add_u32 s17, s17, s18
    s_add_u32 s17, s17, {QT}
    v_and_b32 v{T0}, 31, v0
    v_lshlrev_b32 v{T0}, 2, v{T0}
    buffer_load_dword v{QTL}, v{T0}, s[{sWS}:{sWS+3}], s17 offen
    s_lshl_b32 s17, s{sHead}, 10
    s_add_u32 s17, s17, {KMAX}
    buffer_load_dwordx4 {vr(P,4)}, v{VL16}, s[{sWS}:{sWS+3}], s17 offen
    s_lshl_b32 s18, s{sWave}, 10
    s_add_u32 s17, s{sBase}, s18
    """)
    for k in range(10):
        if k == 9: a(f"s_cmp_ge_u32 s{sWave}, 4\ns_cbranch_scc1 {name}_dskip")
        a(f"s_add_u32 m0, s18, {k*16384}")
        a(f"buffer_load_dwordx4 v{VL16}, s[{sWS}:{sWS+3}], s17 offen lds")
        if k < 9: a(f"s_add_u32 s17, s17, 16384")
    a.label(f"{name}_dskip")
    a(f"""
    s_mul_i32 s17, s{sKS}, {KV_CHUNK}
    v_add_u32 v{VK}, s17, v{VL16}
    v_and_b32 v{T0}, 31, v0
    v_and_b32 v{T1}, 3, v0
    v_or_b32 v{T2}, 4, v{T1}
    v_subrev_u32 v{T3}, 20, v{T0}
    v_cmp_gt_u32 vcc, 8, v{T3}
    v_cndmask_b32 v{T2}, v{T2}, v{T1}, vcc
    v_cmp_gt_u32 vcc, 19, v{T0}
    v_cndmask_b32 v{T2}, v{T2}, v{T0}, vcc
    v_lshlrev_b32 v{T2}, 4, v{T2}
    v_lshrrev_b32 v{T1}, 5, v{LANE}
    v_mul_u32_u24 v{T1}, {KV_VG}, v{T1}
    s_add_u32 s17, s17, {KV_V}
    v_add3_u32 v{VV}, v{T2}, v{T1}, s17
    """)
    for i in range(18): a(f"v_mov_b32 v{QW+i}, 0")
    for i in range(16): a(f"v_mov_b32 v{O+i}, 0")
    pf.stamp(2)
    a("s_waitcnt vmcnt(9)")
    pf.stamp(3)
    a(f"v_dot2_f32_bf16 v{T0}, v{QMv}, v{QMv}, 0")
    for i in range(1, 4): a(f"v_dot2_f32_bf16 v{T0}, v{QMv+i}, v{QMv+i}, v{T0}")
    for sh in (8, 4, 2, 1):
        for i in range(3): a(f"v_max_f32_dpp v{P+i}, v{P+i}, v{P+i} row_ror:{sh} row_mask:0xf bank_mask:0xf")
    a(f"v_mov_b32 v{T1}, v{T0}\nv_permlane32_swap_b32 v{T0}, v{T1}\nv_add_f32 v{T0}, v{T0}, v{T1}")
    a(f"v_dot2_f32_bf16 v{T0}, v{QTL}, v{QTL}, v{T0}")
    for i in range(3):
        a(f"v_mov_b32 v{P+4+i}, v{P+i}")
    for i in range(3):
        a(f"v_permlane32_swap_b32 v{P+i}, v{P+4+i}")
    for i in range(3):
        a(f"v_max_f32 v{P+i}, v{P+i}, v{P+4+i}\nv_mov_b32 v{P+4+i}, v{P+i}")
    for i in range(3):
        a(f"v_permlane16_swap_b32 v{P+i}, v{P+4+i}")
    for i in range(3):
        a(f"v_max_f32 v{P+i}, v{P+i}, v{P+4+i}")
    a(f"""
    v_add_f32 v{P}, v{P}, v{P+1}
    v_add_f32 v{P}, v{P}, v{P+2}
    v_mul_f32 v{T0}, v{T0}, v{P}
    v_sqrt_f32 v{T0}, v{T0}
    v_cmp_gt_u32 vcc, 32, v{LANE}
    v_mul_f32 v{T0}, {f32(1.0 + 1.0/64)}, v{T0}
    v_cndmask_b32 v{QW+2}, 0, v{QTL}, vcc
    v_cndmask_b32 v{QW+7}, 0, v{QTL}, vcc
    v_cndmask_b32 v{QW+10}, v{QTL}, v{QW}, vcc
    v_cndmask_b32 v{QW+15}, v{QTL}, v{QW}, vcc
    v_mov_b32 v{T1}, {f32(BOUND_T)}
    v_cmp_nle_f32 vcc, v{T0}, v{T1}
    s_cmp_eq_u64 vcc, 0
    s_cbranch_scc1 {name}_fast
    """)
    KB = [O, O + 4, O + 8, O + 12, V0, V1, P, P + 4]
    a(f"""
    v_mov_b32 v{T0}, 0xff800000
    s_mov_b32 s17, s{sBase}
    s_mov_b32 s19, 8
    """)
    a.label(f"{name}_fb")
    a(f"s_add_u32 s20, s17, 4096\ns_add_u32 s21, s17, 8192")
    a(f"buffer_load_dwordx4 {vr(KT,4)}, v{VL16}, s[{sWS}:{sWS+3}], s21 offen")
    for tt in range(8):
        a(f"buffer_load_dwordx4 {vr(KB[tt],4)}, v{VL16}, s[{sWS}:{sWS+3}], s{17 if tt < 4 else 20} offen offset:{1024*(tt%4)}")
    a("s_waitcnt vmcnt(0)")
    for tt in range(8):
        s = SB(tt)
        a(f"v_mfma_f32_32x32x16_bf16 {vr(s,16)}, {vr(KB[tt],4)}, {vr(QMv,4)}, 0")
        a(f"v_mfma_f32_32x32x16_bf16 {vr(s,16)}, {vr(KT,4)}, {vr(QW+WIN[tt],4)}, {vr(s,16)}")
        for i in range(8): a(f"v_max3_f32 v{T0}, v{s+2*i}, v{s+2*i+1}, v{T0}")
    a(f"""
    s_add_u32 s17, s17, {KV_CHUNK}
    s_sub_u32 s19, s19, 1
    s_cmp_lg_u32 s19, 0
    s_cbranch_scc1 {name}_fb
    v_mov_b32 v{T1}, v{T0}
    v_permlane32_swap_b32 v{T0}, v{T1}
    v_max_f32 v{T0}, v{T0}, v{T1}
    """)
    for i in range(16): a(f"v_mov_b32 v{O+i}, 0")
    a.label(f"{name}_fast")
    a.flush(4)
    for i in range(16): a(f"v_sub_f32 v{C+i}, 0, v{T0}")
    lq = LQ(a)
    def koff(i): return ((i // 8) % 2) * KV_STAGE + (i % 8) * 1024
    def voff(i, m): return ((i // 8) % 2) * KV_STAGE + (i % 8) * KV_VT + m * 2 * KV_VG
    VK2 = 120; VV2 = 121
    a(f"v_add_u32 v{VK2}, {2*KV_STAGE}, v{VK}\nv_add_u32 v{VV2}, {2*KV_STAGE}, v{VV}")
    rk = lambda i: VK if i < 16 else VK2
    rv = lambda i: VV if i < 16 else VV2
    def rdK(i): lq.issue(("K", i), f"ds_read_b128 {vr(KF,4)}, v{rk(i)} offset:{koff(i)}")
    def rdT(i): lq.issue(("T", i // 8), f"ds_read_b128 {vr(KT,4)}, v{rk(i)} offset:{((i//8)%2)*KV_STAGE + KV_KT}")
    def rdV(i, m): lq.issue(("V", i, m), f"ds_read_b128 {vr(V1 if m else V0,4)}, v{rv(i)} offset:{voff(i,m)}")
    def mS1(i): a(f"v_mfma_f32_32x32x16_bf16 {vr(SB(i),16)}, {vr(KF,4)}, {vr(QMv,4)}, {vr(C,16)}")
    def mS2(i): a(f"v_mfma_f32_32x32x16_bf16 {vr(SB(i),16)}, {vr(KT,4)}, {vr(QW+WIN[i%8],4)}, {vr(SB(i),16)}")
    vw = {0: 6, 1: 4, 2: 2, 3: 0}
    pf.stamp(4)
    a(f"s_waitcnt vmcnt({vw[0]})\ns_barrier")
    pf.stamp(5)
    rdK(0); rdT(0); rdV(0, 0); rdV(0, 1)
    lq.wait(("K", 0)); mS1(0); rdK(1); lq.wait(("T", 0)); mS2(0)
    N = 32
    pfl = [(30, D*D*2, PFV+5, 19, 0)] + [(lo, D*F*2, VL16, 18, off) for lo in (24, 26, 28) for off in (0, 272)]
    if L2PF: pfl = pfl[-2:]
    def touch():
        a(f"""
        v_min_u32 v{PFV+5}, 11, v{LANE}
        v_lshlrev_b32 v{PFV+5}, 7, v{PFV+5}
        s_lshr_b32 s21, s2, 3
        s_lshl_b32 s22, s{sWave}, 5
        s_add_u32 s21, s21, s22
        s_and_b32 s22, s2, 7
        s_cmp_ge_u32 s21, 288
        s_cbranch_scc1 {name}_t2
        s_cmp_ge_u32 s21, 144
        s_cbranch_scc1 {name}_t1
        """)
        srd(a, 44, 24, D * F * 2)
        a(f"s_branch {name}_t0")
        a.label(f"{name}_t1")
        srd(a, 44, 26, D * F * 2)
        a("s_sub_u32 s21, s21, 144")
        a.label(f"{name}_t0")
        a(f"""
        s_mul_i32 s21, s21, {4*F*2}
        s_mul_i32 s23, s22, 31
        s_min_u32 s22, s22, 4
        s_add_u32 s23, s23, s22
        s_mul_i32 s23, s23, 9363
        s_lshr_b32 s23, s23, 16
        s_lshl_b32 s23, s23, 8
        s_add_u32 s21, s21, s23
        s_mov_b32 s22, {F*2}
        s_branch {name}_t4
        """)
        a.label(f"{name}_t2")
        a(f"""
        s_cmp_ge_u32 s21, 396
        s_cbranch_scc1 {name}_t3
        """)
        srd(a, 44, 30, D * D * 2)
        a(f"s_sub_u32 s21, s21, 288\ns_branch {name}_t5")
        a.label(f"{name}_t3")
        srd(a, 44, 40, X_BYTES)
        a(f"""
        s_sub_u32 s21, s21, 396
        s_mul_i32 s22, s22, 48
        s_cmp_ge_u32 s21, 48
        s_cselect_b32 s22, 0x10000, s22
        s_add_u32 s21, s21, s22
        """)
        a.label(f"{name}_t5")
        a(f"s_mul_i32 s21, s21, 6144\ns_mov_b32 s22, 1536")
        a.label(f"{name}_t4")
    def touch_slot(k):
        a(f"buffer_load_dword v{PFV+4}, v{PFV+5}, s[44:47], s21 offen\ns_add_u32 s21, s21, s22")
        for k in vw: vw[k] += 1
    for i in range(N):
        s = SB(i)
        ex = lambda lo: [a(f"v_exp_f32 v{s+r}, v{s+r}") for r in range(lo, lo + 4)]
        cv = lambda m: [a(f"v_cvt_pk_bf16_f32 v{P+4*m+r}, v{s+8*m+2*r}, v{s+8*m+2*r+1}") for r in range(4)]
        if i == PF_AT:
            a(f"s_lshl_b32 s17, s2, 4\ns_add_u32 s17, s17, s{sWave}\ns_mul_i32 s18, s17, 1296\ns_mul_i32 s19, s17, 176")
            a(f"s_mul_i32 s20, s17, 1728\ns_add_u32 s20, s20, {PART}\nv_min_u32 v{PFV+5}, 160, v{VL16}")
            for r in range(4): a(f"v_mov_b32 v{PFV+r}, -1")
            a(f"buffer_store_dwordx4 {vr(PFV,4)}, v{VL16}, s[{sWS}:{sWS+3}], s20 offen sc1")
            a(f"buffer_store_dwordx4 {vr(PFV,4)}, v{VL16}, s[{sWS}:{sWS+3}], s20 offen offset:704 sc1")
            for k in vw: vw[k] += 2
            a(f"s_cmp_ge_u32 s17, 24\ns_cbranch_scc1 {name}_nofl\ns_lshl_b32 s20, s17, 10\ns_add_u32 s20, s20, {FLG}")
            a(f"buffer_store_dwordx4 {vr(PFV,4)}, v{VL16}, s[{sWS}:{sWS+3}], s20 offen sc1")
            a.label(f"{name}_nofl")
        if i > PF_AT and (i - PF_AT) % PF_STEP == 0 and pfl:
            lo, size, pvo, pso, off = pfl.pop(0)
            srd(a, 32, lo, size)
            a(f"buffer_load_dwordx4 {vr(PFV,4)}, v{pvo}, s[32:35], s{pso} offen offset:{off}")
            for k in vw: vw[k] += 1
        if L2PF and i == PF_AT: touch()
        if L2PF and i >= T_AT and (i - T_AT) % T_STEP == 0 and (i - T_AT) // T_STEP < TSL: touch_slot((i - T_AT) // T_STEP)
        if i % 8 == 6 and i + 2 < N:
            pf.stamp(6 + 2 * (i // 8))
            a(f"s_waitcnt vmcnt({vw[i//8+1]})\ns_barrier")
            pf.stamp(7 + 2 * (i // 8))
        if i + 1 < N:
            lq.wait(("K", i + 1)); mS1(i + 1)
            if i + 2 < N: rdK(i + 2)
        ex(0)
        if i + 1 < N:
            lq.wait(("T", (i + 1) // 8)); mS2(i + 1)
            if (i + 1) % 8 == 7 and i + 2 < N: rdT(i + 2)
        ex(4); cv(0); ex(8)
        lq.wait(("V", i, 0))
        a(f"v_mfma_f32_32x32x16_bf16 {vr(O,16)}, {vr(V0,4)}, {vr(P,4)}, {vr(O,16)}")
        if i + 1 < N: rdV(i + 1, 0)
        ex(12); cv(1)
        lq.wait(("V", i, 1))
        a(f"v_mfma_f32_32x32x16_bf16 {vr(O,16)}, {vr(V1,4)}, {vr(P+4,4)}, {vr(O,16)}")
        if i + 1 < N: rdV(i + 1, 1)
    pf.stamp(12)
    a(f"""
    s_and_b32 s17, s{sWave}, 7
    s_mul_i32 s17, s17, 3072
    v_add_u32 v{T0}, s17, v{VL16}
    s_barrier
    s_cmp_eq_u32 s{sKS}, 0
    s_cbranch_scc1 {name}_fin
    ds_write_b128 v{T0}, {vr(O,4)}
    ds_write_b128 v{T0}, {vr(O+4,4)} offset:1024
    ds_write_b128 v{T0}, {vr(O+8,4)} offset:2048
    s_waitcnt lgkmcnt(0)
    s_barrier
    s_branch {name}_done
    """)
    a.label(f"{name}_fin")
    a(f"""
    s_barrier
    ds_read_b128 {vr(8,4)}, v{T0}
    ds_read_b128 {vr(12,4)}, v{T0} offset:1024
    ds_read_b128 {vr(16,4)}, v{T0} offset:2048
    s_lshr_b32 s17, s{sHead}, 1
    s_lshl_b32 s17, s17, 10
    s_and_b32 s18, s{sHead}, 1
    s_lshl_b32 s18, s18, 9
    s_add_u32 s17, s17, s18
    s_mul_i32 s18, s{sTq}, {2*18432}
    s_add_u32 s18, s18, {OF}
    s_add_u32 s17, s17, s18
    v_bfe_u32 v{T1}, v{LANE}, 4, 1
    v_mul_u32_u24 v{T1}, 18432, v{T1}
    v_and_b32 v{T2}, 15, v{LANE}
    v_lshl_add_u32 v{T1}, v{T2}, 4, v{T1}
    v_lshrrev_b32 v{T2}, 5, v{LANE}
    v_lshl_add_u32 v{T2}, v{T2}, 8, v{T1}
    s_lshr_b32 s19, s{sHead}, 2
    s_lshl_b32 s19, s19, 8
    s_and_b32 s20, s{sHead}, 3
    s_lshl_b32 s20, s20, 2
    s_add_u32 s19, s19, s20
    s_add_u32 s19, s19, 16384
    s_add_u32 s19, s19, s18
    s_waitcnt lgkmcnt(0)
    """)
    for i in range(11): a(f"v_add_f32 v{O+i}, v{O+i}, v{8+i}")
    a(f"""
    v_mov_b32 v{T3}, v{O+10}
    v_permlane32_swap_b32 v{O+10}, v{T3}
    v_rcp_f32 v{T3}, v{O+10}
    """)
    for i in range(10): a(f"v_mul_f32 v{O+i}, v{O+i}, v{T3}")
    for i in range(5): a(f"v_cvt_pk_bf16_f32 v{P+i}, v{O+2*i}, v{O+2*i+1}")
    a(f"""
    buffer_store_dwordx4 {vr(P,4)}, v{T2}, s[{sWS}:{sWS+3}], s17 offen
    s_mov_b32 exec_hi, 0
    buffer_store_dword v{P+4}, v{T1}, s[{sWS}:{sWS+3}], s19 offen
    """)
    a.label(f"{name}_done")
    pf.stamp(13)
    pf.dump(sWS, sWave, 8)
    a.label(f"{name}_end")
    a("s_endpgm")
    return dict(name=name, grid=256, block=1024, lds=K2_LDS, vgpr=128, accum=128, sgpr=100 if Prof.enabled else 48)
```

```python
import sys, importlib
sys.path.insert(0, "gen")
from asmlib import *
HEADER = open("sequential_preLN__mha_block__geglu_ffn__prompt.s.ref").read().split("; Override launch")[0]
def build(gens, path):
    a = Asm(); metas = []
    for g, name in gens:
        a.hist = []; a.kname = name[:2]
        metas.append(g(a, name))
    s = HEADER
    for m in metas:
        s += f"; @launch kernel={m['name']} grid=({m['grid']},1,1) block=({m['block']},1,1) lds={m['lds']}\n"
    s += '.amdgcn_target "amdgcn-amd-amdhsa--gfx950"\n.text\n'
    for m in metas: s += f".globl {m['name']}\n.type {m['name']},@function\n"
    s += a.text() + "text_end:\n    s_endpgm\n"
    s += '.section .rodata,"a"\n'
    for m in metas: s += desc(m["name"], m["vgpr"], m["sgpr"], m["accum"])
    open(path, "w").write(s)
    print("instrs", a.count, "auto-nops", a.nops, "bytes", len(s))
MODS = (("k34", "gen_k34", "k34_ffn1_kernel"), ("k5", "gen_k5", "k5_ffn2_kernel"))
OLD = (("k3", "gen_k3", "k3_wo_kernel"), ("k4", "gen_k4", "k4_ffn1_kernel"), ("k5", "gen_k5", "k5_ffn2_kernel"))
def all_gens(MODS=MODS):
    from k1 import gen_k1
    from k2 import gen_k2
    gens = [(gen_k1, "k1_qkv_kernel"), (gen_k2, "k2_attn_kernel")]
    for mod, fn, nm in MODS:
        try:
            m = importlib.import_module(mod)
        except ModuleNotFoundError:
            break
        gens.append((getattr(m, fn), nm))
    return gens
if __name__ == "__main__":
    build(all_gens(), "full.s")
    Prof.enabled = True
    build(all_gens(), "prof.s")
```

```python
import re

TRANS = ("v_exp_f32", "v_log_f32", "v_rcp_f32", "v_rsq_f32", "v_sqrt_f32", "v_sin_f32", "v_cos_f32",
         "v_exp_f16", "v_rcp_f16", "v_rcp_iflag_f32")

def regs_of(tok):
    tok = tok.strip()
    neg = tok.lstrip("-")
    m = re.fullmatch(r"\|?(?:abs\()?([vas])(\d+)\)?\|?", neg)
    if m: return [(m.group(1), int(m.group(2)))]
    m = re.fullmatch(r"([vas])\[(\d+):(\d+)\]", neg)
    if m: return [(m.group(1), i) for i in range(int(m.group(2)), int(m.group(3)) + 1)]
    if neg == "vcc": return [("s", 106), ("s", 107)]
    if neg == "vcc_lo": return [("s", 106)]
    if neg == "vcc_hi": return [("s", 107)]
    if neg == "exec": return [("s", 126), ("s", 127)]
    if neg == "m0": return [("s", 124)]
    return []

class Ins:
    __slots__ = ("text", "op", "kind", "wr", "rd", "passes", "srcC", "srcAB", "states", "dpp", "store_data", "lds_dma", "is_trans", "sdwa", "dotAB")
    def __init__(self, text):
        self.text = text
        t = text.split(";")[0].strip()
        parts = t.split(None, 1)
        self.op = op = parts[0]
        rest = parts[1] if len(parts) > 1 else ""
        ops = []; cur = ""; depth = 0
        for ch in rest:
            if ch == "[": depth += 1
            if ch == "]": depth -= 1
            if ch == "," and depth == 0: ops.append(cur.strip()); cur = ""
            else: cur += ch
        if cur.strip(): ops.append(cur.strip())
        mods = ""
        if ops:
            sp = ops[-1].split(None, 1)
            ops[-1] = sp[0]
            if len(sp) > 1: mods = sp[1]
        self.wr = set(); self.rd = set(); self.passes = 0; self.srcC = set(); self.srcAB = set()
        self.states = 1; self.dpp = False; self.store_data = set(); self.lds_dma = False
        self.is_trans = False; self.sdwa = "sdwa" in op or "op_sel" in mods
        R = [regs_of(o) for o in ops]
        self.dotAB = (set(R[1]) | set(R[2])) if op.startswith("v_dot") else set()
        if op == "s_nop":
            self.kind = "nop"; self.states = int(ops[0], 0) + 1
        elif op.startswith("v_mfma"):
            self.kind = "mfma"
            self.wr = set(R[0]); self.srcAB = set(R[1]) | set(R[2]); self.srcC = set(R[3]); self.rd = self.srcAB | self.srcC
            self.passes = 8 if "32x32x16" in op else 4 if "16x16x32" in op else 2 if "4x4x4" in op else 16
        elif op.startswith("v_"):
            self.kind = "valu"
            self.dpp = "_dpp" in op or "row_" in mods or "quad_perm" in mods
            self.is_trans = any(op.startswith(x) for x in TRANS)
            if op.startswith("v_permlane"):
                self.wr = set(R[0]) | set(R[1]); self.rd = set(self.wr)
            elif op.startswith("v_cmp"):
                self.wr = set(R[0]);
                for r in R[1:]: self.rd |= set(r)
                if op.startswith("v_cmpx"): self.wr |= set(regs_of("exec"))
            elif op.startswith(("v_add_co", "v_sub_co", "v_addc_co", "v_subb_co", "v_subrev_co", "v_mad_u64")):
                self.wr = set(R[0]) | set(R[1])
                for r in R[2:]: self.rd |= set(r)
            else:
                self.wr = set(R[0])
                for r in R[1:]: self.rd |= set(r)
                if op.startswith(("v_fmac", "v_dot2c", "v_pk_fmac", "v_writelane")) or "UNUSED_PRESERVE" in mods or self.dpp:
                    self.rd |= set(R[0])
                if op.startswith("v_cndmask") and len(ops) == 3: self.rd |= set(regs_of("vcc"))
        elif op.startswith("ds_"):
            self.kind = "ds"
            if op.startswith(("ds_read", "ds_bpermute", "ds_permute", "ds_swizzle")) or "_rtn" in op:
                self.wr = set(R[0])
                for r in R[1:]: self.rd |= set(r)
            else:
                for r in R: self.rd |= set(r)
        elif op.startswith(("buffer_", "global_")):
            self.kind = "vmem"
            lds = " lds" in (" " + mods) or "_lds_" in op
            self.lds_dma = lds
            if lds:
                for r in R: self.rd |= set(r)
                self.rd |= set(regs_of("m0"))
            elif "load" in op:
                self.wr = set(R[0])
                for r in R[1:]: self.rd |= set(r)
            elif "atomic" in op and "sc0" in mods and op.startswith("global"):
                self.wr = set(R[0])
                for r in R[1:]: self.rd |= set(r)
            else:
                for r in R: self.rd |= set(r)
                if "atomic" in op and "sc0" in mods: self.wr = set(R[0])
                if op.startswith("buffer_store") and ("x4" in op or "x3" in op): self.store_data = set(R[0])
                if op.startswith("global_store") and ("x4" in op or "x3" in op): self.store_data = set(R[1])
        elif op.startswith("s_"):
            self.kind = "salu"
            if op.startswith(("s_cmp", "s_cbranch", "s_branch", "s_waitcnt", "s_barrier", "s_setprio", "s_sleep", "s_endpgm", "s_bitcmp")):
                for r in R: self.rd |= set(r)
            else:
                if R: self.wr = set(R[0])
                for r in R[1:]: self.rd |= set(r)
                if "saveexec" in op: self.wr |= set(regs_of("exec"))
        else:
            self.kind = "other"

XDL_D_VALU = {2: 5, 4: 8, 8: 12, 16: 20}
XDL_D_AB = {2: 5, 4: 8, 8: 12, 16: 20}
XDL_D_C_OVERLAP = {2: 4, 4: 6, 8: 10, 16: 18}
XDL_C_WAR = {2: 1, 4: 3, 8: 7, 16: 15}

def need(p, c):
    n = 0
    vw = {r for r in p.wr if r[0] in "va"}
    sw = {r for r in p.wr if r[0] == "s"}
    if p.kind == "valu" and p.op.startswith("v_dot"):
        if c.op != p.op:
            if vw & (c.rd | c.wr): n = max(n, 3)
        elif vw & c.dotAB: n = max(n, 3)
    if p.kind == "valu":
        if c.kind == "mfma" and vw & c.rd: n = max(n, 2)
        if c.kind == "valu":
            if c.dpp and vw & c.rd: n = max(n, 2)
            if c.op.startswith("v_permlane") and vw & c.rd: n = max(n, 2)
            if c.op.startswith(("v_readlane", "v_readfirstlane")) and vw & c.rd: n = max(n, 1)
            if p.is_trans and not c.is_trans and vw & c.rd: n = max(n, 1)
            if p.sdwa and vw & (c.rd | c.wr): n = max(n, 1)
            if sw & c.rd: n = max(n, 4 if c.op.startswith(("v_readlane", "v_writelane")) else 2)
            if (("s", 126) in sw) and (c.dpp): n = max(n, 5)
            if (("s", 126) in sw) and c.op.startswith(("v_readlane", "v_readfirstlane", "v_writelane", "v_permlane")): n = max(n, 4)
        if c.kind == "mfma" and ("s", 126) in sw: n = max(n, 4)
        if c.kind == "vmem" and sw & c.rd: n = max(n, 5)
        if c.kind == "salu" and sw & c.rd: n = max(n, 1)
    if p.kind == "mfma":
        if c.kind == "mfma":
            if p.wr & c.srcAB: n = max(n, XDL_D_AB[p.passes])
            if p.wr & c.srcC:
                if p.wr == c.srcC and p.passes == c.passes: n = max(n, 2 if p.passes == 2 else 0)
                else: n = max(n, XDL_D_C_OVERLAP[p.passes])
            elif p.wr & c.wr: n = max(n, XDL_D_C_OVERLAP[p.passes])
        elif c.kind in ("valu", "vmem", "ds"):
            if p.wr & (c.rd | c.wr): n = max(n, XDL_D_VALU[p.passes])
            if c.kind == "valu" and p.srcC & c.wr: n = max(n, XDL_C_WAR[p.passes])
    if p.kind == "vmem" and p.store_data:
        if c.kind == "valu" and p.store_data & c.wr: n = max(n, 2)
        elif c.kind in ("mfma", "ds", "vmem") and p.store_data & c.wr: n = max(n, 1)
    if p.kind == "salu" and ("s", 124) in p.wr and c.lds_dma: n = max(n, 1)
    return n

class Asm:
    store_mod = {}
    kname = ""
    def __init__(self):
        self.out = []
        self.hist = []
        self.nops = 0
        self.count = 0
    def raw(self, s):
        self.out.append(s)
    def label(self, l):
        self.out.append(f"{l}:")
    def __call__(self, text):
        for line in text.strip().split("\n"):
            line = line.strip()
            if not line or line.startswith(";"):
                continue
            if line.endswith(":"):
                self.label(line[:-1]); continue
            sm = Asm.store_mod.get(self.kname, "")
            if sm and line.startswith("buffer_store_dwordx4" if sm.endswith("4") else "buffer_store") and "s96" not in line and " sc" not in line:
                line = line + " sc1"
            c = Ins(line)
            dist = 0; req = 0
            for p in reversed(self.hist[-24:]):
                n = need(p, c)
                if n > dist: req = max(req, n - dist)
                dist += p.states
                if dist >= 20: break
            while req > 0:
                k = min(req, 16)
                nop = Ins(f"s_nop {k-1}")
                self.hist.append(nop); self.out.append(f"    s_nop {k-1}"); self.nops += 1
                req -= k
            self.hist.append(c); self.out.append("    " + line); self.count += 1
            if len(self.hist) > 64: self.hist = self.hist[-32:]
    def flush(self, n=20):
        self(f"s_nop 15\ns_nop {n-17}" if n > 16 else f"s_nop {n-1}")
    def text(self):
        return "\n".join(self.out) + "\n"

def desc(name, vgpr, sgpr=102, accum=None):
    if accum is None: accum = (vgpr + 3) // 4 * 4
    return f""".p2align 6
.amdhsa_kernel {name}
  .amdhsa_next_free_vgpr {vgpr}
  .amdhsa_next_free_sgpr {sgpr}
  .amdhsa_accum_offset {accum}
  .amdhsa_group_segment_fixed_size 0
  .amdhsa_kernarg_size 80
  .amdhsa_user_sgpr_count 2
  .amdhsa_user_sgpr_kernarg_segment_ptr 1
  .amdhsa_system_sgpr_workgroup_id_x 1
.end_amdhsa_kernel
"""

def vr(b, n): return f"v[{b}:{b+n-1}]" if n > 1 else f"v{b}"
def ar(b, n): return f"a[{b}:{b+n-1}]" if n > 1 else f"a{b}"
def sr(b, n): return f"s[{b}:{b+n-1}]" if n > 1 else f"s{b}"
def f32(x):
    import struct
    return "0x%08x" % struct.unpack("<I", struct.pack("<f", x))[0]

PROF_BASE = 0x3800000
class Prof:
    enabled = False
    def __init__(self, a, kidx): self.a = a; self.k = kidx; self.n = 0
    def start(self):
        if not Prof.enabled: return
        self.a("s_memrealtime s[64:65]\ns_memtime s[66:67]"); self.n = 2
    def stamp(self, i):
        if not Prof.enabled: return
        self.a(f"s_memtime s[{64+2*i}:{65+2*i}]"); self.n = max(self.n, i + 1)
    def dump(self, srd, swave, vt, drain=True):
        if not Prof.enabled: return
        a = self.a
        if drain: a("s_waitcnt vmcnt(0)")
        a(f"s_memtime s[92:93]\ns_memrealtime s[94:95]\ns_waitcnt lgkmcnt(0)")
        a(f"s_lshl_b32 s96, s2, 4\ns_add_u32 s96, s96, s{swave}\ns_lshl_b32 s96, s96, 7\ns_add_u32 s96, s96, {PROF_BASE + self.k * 0x100000}")
        a(f"s_mov_b64 exec, 1\nv_mov_b32 v{vt+2}, 0")
        for i in range(16):
            a(f"v_mov_b32 v{vt}, s{64+2*i}\nv_mov_b32 v{vt+1}, s{65+2*i}\nbuffer_store_dwordx2 v[{vt}:{vt+1}], v{vt+2}, s[{srd}:{srd+3}], s96 offen offset:{8*i}")


CODE_PF = True
def code_pf(a, name, sWave, wave, s0, vt, vd, nchunk, end=None):
    if not CODE_PF: return
    end = end or f"{name}_end"
    a(f"""
    s_cmp_lg_u32 s{sWave}, {wave}
    s_cbranch_scc1 {name}_cpf
    s_getpc_b64 s[{s0}:{s0+1}]
    """)
    a.label(f"{name}_pc")
    a(f"""
    s_lshr_b32 s{s0+2}, s2, 3
    s_and_b32 s{s0+2}, s{s0+2}, {nchunk-1}
    s_lshl_b32 s{s0+2}, s{s0+2}, 13
    v_and_b32 v{vt}, 63, v0
    v_lshlrev_b32 v{vt}, 7, v{vt}
    v_add_u32 v{vt}, s{s0+2}, v{vt}
    v_min_u32 v{vt}, {end}-{name}_pc, v{vt}
    global_load_dword v{vd}, v{vt}, s[{s0}:{s0+1}]
    """)
    a.label(f"{name}_cpf")
```

```python
from asmlib import *
from layout import *
from k1 import srd

K2_LDS = KV_HEAD
BOUND_T = 40.0

class LQ:
    def __init__(self, a): self.a = a; self.q = []
    def issue(self, tag, text): self.a(text); self.q.append(tag)
    def wait(self, tag):
        if tag not in self.q: return
        i = len(self.q) - 1 - self.q[::-1].index(tag)
        n = len(self.q) - 1 - i
        self.a(f"s_waitcnt lgkmcnt({min(n,15)})")
        self.q = self.q[i + 1:]
    def clear(self): self.q = []

PF_AT = 7
PF_STEP = 2
L2PF = True
T_AT = 13; T_STEP = 2; TSL = 4
PACK = False; PK = (9, 12, 15)
def gen_k2(a, name, prefetch=None):
    PFV = 122
    SB = lambda i: 0 + 16 * (i % 2) + 8
    C = 40; O = 56; P = 72; KF = 80; KT = 84; V0 = 88; V1 = 92; QMv = 96; QW = 100
    VK = 118; VV = 119; LANE = 1; T0 = 2; T1 = 3; T2 = 4; T3 = 5; QTL = 6; VL16 = 7
    sWS = 8; sWave = 12; sHead = 13; sTq = 14; sKS = 15; sBase = 16
    WIN = [2, 6, 0, 4, 10, 14, 8, 12]
    a.raw(f".p2align 8\n{name}:")
    pf = Prof(a, 1)
    a(f"""
    s_cmp_ge_u32 s2, 256
    s_cbranch_scc1 {name}_end
    """)
    pf.start()
    a(f"""
    s_load_dwordx2 s[4:5], s[0:1], 72
    s_load_dwordx4 s[24:27], s[0:1], 32
    s_load_dwordx2 s[28:29], s[0:1], 48
    s_load_dwordx2 s[30:31], s[0:1], 16
    s_load_dwordx2 s[40:41], s[0:1], 0
    v_lshrrev_b32 v{T0}, 6, v0
    v_and_b32 v{LANE}, 63, v0
    v_readfirstlane_b32 s{sWave}, v{T0}
    v_lshlrev_b32 v{VL16}, 4, v{LANE}
    """)
    code_pf(a, name, sWave, 15, 36, T0, PFV + 4, 2)
    a(f"""
    s_and_b32 s17, s2, 7
    s_lshr_b32 s18, s2, 3
    s_lshl_b32 s{sHead}, s17, 2
    s_lshr_b32 s19, s18, 3
    s_add_u32 s{sHead}, s{sHead}, s19
    s_and_b32 s18, s18, 7
    s_lshl_b32 s{sTq}, s18, 3
    s_and_b32 s19, s{sWave}, 7
    s_add_u32 s{sTq}, s{sTq}, s19
    s_lshr_b32 s{sKS}, s{sWave}, 3
    s_mul_i32 s{sBase}, s{sHead}, {KV_HEAD}
    s_add_u32 s{sBase}, s{sBase}, {KV}
    s_waitcnt lgkmcnt(0)
    """)
    srd(a, sWS, 4, WS_BYTES)
    a(f"""
    s_lshl_b32 s17, s{sHead}, 16
    s_lshl_b32 s18, s{sTq}, 10
    s_add_u32 s17, s17, s18
    buffer_load_dwordx4 {vr(QMv,4)}, v{VL16}, s[{sWS}:{sWS+3}], s17 offen
    s_lshl_b32 s17, s{sHead}, 13
    s_lshl_b32 s18, s{sTq}, 7
    s_add_u32 s17, s17, s18
    s_add_u32 s17, s17, {QT}
    v_and_b32 v{T0}, 31, v0
    v_lshlrev_b32 v{T0}, 2, v{T0}
    buffer_load_dword v{QTL}, v{T0}, s[{sWS}:{sWS+3}], s17 offen
    s_lshl_b32 s17, s{sHead}, 10
    s_add_u32 s17, s17, {KMAX}
    buffer_load_dwordx4 {vr(P,4)}, v{VL16}, s[{sWS}:{sWS+3}], s17 offen
    s_lshl_b32 s18, s{sWave}, 10
    s_add_u32 s17, s{sBase}, s18
    """)
    for k in range(10):
        if k == 9: a(f"s_cmp_ge_u32 s{sWave}, 4\ns_cbranch_scc1 {name}_dskip")
        a(f"s_add_u32 m0, s18, {k*16384}")
        a(f"buffer_load_dwordx4 v{VL16}, s[{sWS}:{sWS+3}], s17 offen lds")
        if k < 9: a(f"s_add_u32 s17, s17, 16384")
    a.label(f"{name}_dskip")
    a(f"""
    s_mul_i32 s17, s{sKS}, {KV_CHUNK}
    v_add_u32 v{VK}, s17, v{VL16}
    v_and_b32 v{T0}, 31, v0
    v_and_b32 v{T1}, 3, v0
    v_or_b32 v{T2}, 4, v{T1}
    v_subrev_u32 v{T3}, 20, v{T0}
    v_cmp_gt_u32 vcc, 8, v{T3}
    v_cndmask_b32 v{T2}, v{T2}, v{T1}, vcc
    v_cmp_gt_u32 vcc, 19, v{T0}
    v_cndmask_b32 v{T2}, v{T2}, v{T0}, vcc
    v_lshlrev_b32 v{T2}, 4, v{T2}
    v_lshrrev_b32 v{T1}, 5, v{LANE}
    v_mul_u32_u24 v{T1}, {KV_VG}, v{T1}
    s_add_u32 s17, s17, {KV_V}
    v_add3_u32 v{VV}, v{T2}, v{T1}, s17
    """)
    for i in range(18): a(f"v_mov_b32 v{QW+i}, 0")
    for i in range(16): a(f"v_mov_b32 v{O+i}, 0")
    pf.stamp(2)
    a("s_waitcnt vmcnt(9)")
    pf.stamp(3)
    a(f"v_dot2_f32_bf16 v{T0}, v{QMv}, v{QMv}, 0")
    for i in range(1, 4): a(f"v_dot2_f32_bf16 v{T0}, v{QMv+i}, v{QMv+i}, v{T0}")
    for sh in (8, 4, 2, 1):
        for i in range(3): a(f"v_max_f32_dpp v{P+i}, v{P+i}, v{P+i} row_ror:{sh} row_mask:0xf bank_mask:0xf")
    a(f"v_mov_b32 v{T1}, v{T0}\nv_permlane32_swap_b32 v{T0}, v{T1}\nv_add_f32 v{T0}, v{T0}, v{T1}")
    a(f"v_dot2_f32_bf16 v{T0}, v{QTL}, v{QTL}, v{T0}")
    for i in range(3):
        a(f"v_mov_b32 v{P+4+i}, v{P+i}")
    for i in range(3):
        a(f"v_permlane32_swap_b32 v{P+i}, v{P+4+i}")
    for i in range(3):
        a(f"v_max_f32 v{P+i}, v{P+i}, v{P+4+i}\nv_mov_b32 v{P+4+i}, v{P+i}")
    for i in range(3):
        a(f"v_permlane16_swap_b32 v{P+i}, v{P+4+i}")
    for i in range(3):
        a(f"v_max_f32 v{P+i}, v{P+i}, v{P+4+i}")
    a(f"""
    v_add_f32 v{P}, v{P}, v{P+1}
    v_add_f32 v{P}, v{P}, v{P+2}
    v_mul_f32 v{T0}, v{T0}, v{P}
    v_sqrt_f32 v{T0}, v{T0}
    v_cmp_gt_u32 vcc, 32, v{LANE}
    v_mul_f32 v{T0}, {f32(1.0 + 1.0/64)}, v{T0}
    v_cndmask_b32 v{QW+2}, 0, v{QTL}, vcc
    v_cndmask_b32 v{QW+7}, 0, v{QTL}, vcc
    v_cndmask_b32 v{QW+10}, v{QTL}, v{QW}, vcc
    v_cndmask_b32 v{QW+15}, v{QTL}, v{QW}, vcc
    v_mov_b32 v{T1}, {f32(BOUND_T)}
    v_cmp_nle_f32 vcc, v{T0}, v{T1}
    s_cmp_eq_u64 vcc, 0
    s_cbranch_scc1 {name}_fast
    """)
    KB = [O, O + 4, O + 8, O + 12, V0, V1, P, P + 4]
    a(f"""
    v_mov_b32 v{T0}, 0xff800000
    s_mov_b32 s17, s{sBase}
    s_mov_b32 s19, 8
    """)
    a.label(f"{name}_fb")
    a(f"s_add_u32 s20, s17, 4096\ns_add_u32 s21, s17, 8192")
    a(f"buffer_load_dwordx4 {vr(KT,4)}, v{VL16}, s[{sWS}:{sWS+3}], s21 offen")
    for tt in range(8):
        a(f"buffer_load_dwordx4 {vr(KB[tt],4)}, v{VL16}, s[{sWS}:{sWS+3}], s{17 if tt < 4 else 20} offen offset:{1024*(tt%4)}")
    a("s_waitcnt vmcnt(0)")
    for tt in range(8):
        s = SB(tt)
        a(f"v_mfma_f32_32x32x16_bf16 {vr(s,16)}, {vr(KB[tt],4)}, {vr(QMv,4)}, 0")
        a(f"v_mfma_f32_32x32x16_bf16 {vr(s,16)}, {vr(KT,4)}, {vr(QW+WIN[tt],4)}, {vr(s,16)}")
        for i in range(8): a(f"v_max3_f32 v{T0}, v{s+2*i}, v{s+2*i+1}, v{T0}")
    a(f"""
    s_add_u32 s17, s17, {KV_CHUNK}
    s_sub_u32 s19, s19, 1
    s_cmp_lg_u32 s19, 0
    s_cbranch_scc1 {name}_fb
    v_mov_b32 v{T1}, v{T0}
    v_permlane32_swap_b32 v{T0}, v{T1}
    v_max_f32 v{T0}, v{T0}, v{T1}
    """)
    for i in range(16): a(f"v_mov_b32 v{O+i}, 0")
    a.label(f"{name}_fast")
    a.flush(4)
    for i in range(16): a(f"v_sub_f32 v{C+i}, 0, v{T0}")
    lq = LQ(a)
    def koff(i): return ((i // 8) % 2) * KV_STAGE + (i % 8) * 1024
    def voff(i, m): return ((i // 8) % 2) * KV_STAGE + (i % 8) * KV_VT + m * 2 * KV_VG
    VK2 = 120; VV2 = 121
    a(f"v_add_u32 v{VK2}, {2*KV_STAGE}, v{VK}\nv_add_u32 v{VV2}, {2*KV_STAGE}, v{VV}")
    rk = lambda i: VK if i < 16 else VK2
    rv = lambda i: VV if i < 16 else VV2
    def rdK(i): lq.issue(("K", i), f"ds_read_b128 {vr(KF,4)}, v{rk(i)} offset:{koff(i)}")
    def rdT(i): lq.issue(("T", i // 8), f"ds_read_b128 {vr(KT,4)}, v{rk(i)} offset:{((i//8)%2)*KV_STAGE + KV_KT}")
    def rdV(i, m): lq.issue(("V", i, m), f"ds_read_b128 {vr(V1 if m else V0,4)}, v{rv(i)} offset:{voff(i,m)}")
    def mS1(i): a(f"v_mfma_f32_32x32x16_bf16 {vr(SB(i),16)}, {vr(KF,4)}, {vr(QMv,4)}, {vr(C,16)}")
    def mS2(i): a(f"v_mfma_f32_32x32x16_bf16 {vr(SB(i),16)}, {vr(KT,4)}, {vr(QW+WIN[i%8],4)}, {vr(SB(i),16)}")
    vw = {0: 6, 1: 4, 2: 2, 3: 0}
    pf.stamp(4)
    a(f"s_waitcnt vmcnt({vw[0]})\ns_barrier")
    pf.stamp(5)
    rdK(0); rdT(0); rdV(0, 0); rdV(0, 1)
    lq.wait(("K", 0)); mS1(0); rdK(1); lq.wait(("T", 0)); mS2(0)
    N = 32
    pfl = [(30, D*D*2, PFV+5, 19, 0)] + [(lo, D*F*2, VL16, 18, off) for lo in (24, 26, 28) for off in (0, 272)]
    if L2PF: pfl = pfl[-2:]
    if PACK: pfl = []
    def pk_load(rnd):
        if rnd == 0:
            srd(a, 32, 28, D * F * 2)
            a("s_mov_b32 s18, s17")
        else:
            a(f"""
            s_lshl_b32 s18, s{sWave}, 8
            s_add_u32 s18, s18, s2
            s_cmp_ge_u32 s18, 1088
            s_cbranch_scc1 {name}_pk1
            s_add_u32 s18, s18, 4096
            """)
        a(f"""
        s_mul_i32 s19, s18, 51782
        s_lshr_b32 s19, s19, 26
        s_mul_i32 s20, s19, 1296
        s_sub_u32 s20, s18, s20
        s_lshl_b32 s20, s20, 6
        s_mul_hi_u32 s36, s20, 0x38e38e39
        s_lshr_b32 s36, s36, 2
        s_mul_i32 s37, s36, 18
        s_sub_u32 s20, s20, s37
        v_add_u32 v{PFV+4}, s20, v{LANE}
        v_mul_u32_u24 v{PFV+5}, 57, v{PFV+4}
        v_lshrrev_b32 v{PFV+5}, 10, v{PFV+5}
        v_mul_u32_u24 v{PFV+5}, 864, v{PFV+5}
        v_lshl_add_u32 v{PFV+4}, v{PFV+4}, 4, v{PFV+5}
        s_mul_i32 s36, s36, {D*2}
        s_mul_i32 s19, s19, 288
        s_add_u32 s36, s36, s19
        s_lshl_b32 s18, s18, 10
        s_add_u32 s18, s18, {WDP}
        buffer_load_dwordx4 {vr(PFV,4)}, v{PFV+4}, s[32:35], s36 offen
        """)
        if rnd: a.label(f"{name}_pk1")
        else:
            for k in vw: vw[k] += 1
    def pk_store(rnd):
        if rnd: a(f"s_cmp_lt_u32 s18, {WDP}\ns_cbranch_scc1 {name}_pk2")
        a(f"s_waitcnt vmcnt(0)\nbuffer_store_dwordx4 {vr(PFV,4)}, v{VL16}, s[{sWS}:{sWS+3}], s18 offen sc1")
        if rnd: a.label(f"{name}_pk2")
        else:
            for k in vw: vw[k] = 40
    def touch():
        a(f"""
        v_min_u32 v{PFV+5}, 11, v{LANE}
        v_lshlrev_b32 v{PFV+5}, 7, v{PFV+5}
        s_lshr_b32 s21, s2, 3
        s_lshl_b32 s22, s{sWave}, 5
        s_add_u32 s21, s21, s22
        s_and_b32 s22, s2, 7
        s_cmp_ge_u32 s21, 288
        s_cbranch_scc1 {name}_t2
        s_cmp_ge_u32 s21, 144
        s_cbranch_scc1 {name}_t1
        """)
        srd(a, 44, 24, D * F * 2)
        a(f"s_branch {name}_t0")
        a.label(f"{name}_t1")
        srd(a, 44, 26, D * F * 2)
        a("s_sub_u32 s21, s21, 144")
        a.label(f"{name}_t0")
        a(f"""
        s_mul_i32 s21, s21, {4*F*2}
        s_mul_i32 s23, s22, 31
        s_min_u32 s22, s22, 4
        s_add_u32 s23, s23, s22
        s_mul_i32 s23, s23, 9363
        s_lshr_b32 s23, s23, 16
        s_lshl_b32 s23, s23, 8
        s_add_u32 s21, s21, s23
        s_mov_b32 s22, {F*2}
        s_branch {name}_t4
        """)
        a.label(f"{name}_t2")
        a(f"""
        s_cmp_ge_u32 s21, 396
        s_cbranch_scc1 {name}_t3
        """)
        srd(a, 44, 30, D * D * 2)
        a(f"s_sub_u32 s21, s21, 288\ns_branch {name}_t5")
        a.label(f"{name}_t3")
        srd(a, 44, 40, X_BYTES)
        a(f"""
        s_sub_u32 s21, s21, 396
        s_mul_i32 s22, s22, 48
        s_cmp_ge_u32 s21, 48
        s_cselect_b32 s22, 0x10000, s22
        s_add_u32 s21, s21, s22
        """)
        a.label(f"{name}_t5")
        a(f"s_mul_i32 s21, s21, 6144\ns_mov_b32 s22, 1536")
        a.label(f"{name}_t4")
    def touch_slot(k):
        a(f"buffer_load_dword v{PFV+4}, v{PFV+5}, s[44:47], s21 offen\ns_add_u32 s21, s21, s22")
        for k in vw: vw[k] += 1
    for i in range(N):
        s = SB(i)
        ex = lambda lo: [a(f"v_exp_f32 v{s+r}, v{s+r}") for r in range(lo, lo + 4)]
        cv = lambda m: [a(f"v_cvt_pk_bf16_f32 v{P+4*m+r}, v{s+8*m+2*r}, v{s+8*m+2*r+1}") for r in range(4)]
        if i == PF_AT:
            a(f"s_lshl_b32 s17, s2, 4\ns_add_u32 s17, s17, s{sWave}\ns_mul_i32 s18, s17, 1296\ns_mul_i32 s19, s17, 176")
            a(f"s_mul_i32 s20, s17, 1728\ns_add_u32 s20, s20, {PART}\nv_min_u32 v{PFV+5}, 160, v{VL16}")
            for r in range(4): a(f"v_mov_b32 v{PFV+r}, -1")
            a(f"buffer_store_dwordx4 {vr(PFV,4)}, v{VL16}, s[{sWS}:{sWS+3}], s20 offen sc1")
            a(f"buffer_store_dwordx4 {vr(PFV,4)}, v{VL16}, s[{sWS}:{sWS+3}], s20 offen offset:704 sc1")
            for k in vw: vw[k] += 2
            a(f"s_cmp_ge_u32 s17, 24\ns_cbranch_scc1 {name}_nofl\ns_lshl_b32 s20, s17, 10\ns_add_u32 s20, s20, {FLG}")
            a(f"buffer_store_dwordx4 {vr(PFV,4)}, v{VL16}, s[{sWS}:{sWS+3}], s20 offen sc1")
            a.label(f"{name}_nofl")
        if i > PF_AT and (i - PF_AT) % PF_STEP == 0 and pfl:
            lo, size, pvo, pso, off = pfl.pop(0)
            srd(a, 32, lo, size)
            a(f"buffer_load_dwordx4 {vr(PFV,4)}, v{pvo}, s[32:35], s{pso} offen offset:{off}")
            for k in vw: vw[k] += 1
        if PACK:
            if i == PK[0]: pk_load(0)
            if i == PK[1]: pk_store(0); pk_load(1)
            if i == PK[2]: pk_store(1)
        if L2PF and i == T_AT: touch()
        if L2PF and i >= T_AT and (i - T_AT) % T_STEP == 0 and (i - T_AT) // T_STEP < TSL: touch_slot((i - T_AT) // T_STEP)
        if i % 8 == 6 and i + 2 < N:
            pf.stamp(6 + 2 * (i // 8))
            a(f"s_waitcnt vmcnt({vw[i//8+1]})\ns_barrier")
            pf.stamp(7 + 2 * (i // 8))
        if i + 1 < N:
            lq.wait(("K", i + 1)); mS1(i + 1)
            if i + 2 < N: rdK(i + 2)
        ex(0)
        if i + 1 < N:
            lq.wait(("T", (i + 1) // 8)); mS2(i + 1)
            if (i + 1) % 8 == 7 and i + 2 < N: rdT(i + 2)
        ex(4); cv(0); ex(8)
        lq.wait(("V", i, 0))
        a(f"v_mfma_f32_32x32x16_bf16 {vr(O,16)}, {vr(V0,4)}, {vr(P,4)}, {vr(O,16)}")
        if i + 1 < N: rdV(i + 1, 0)
        ex(12); cv(1)
        lq.wait(("V", i, 1))
        a(f"v_mfma_f32_32x32x16_bf16 {vr(O,16)}, {vr(V1,4)}, {vr(P+4,4)}, {vr(O,16)}")
        if i + 1 < N: rdV(i + 1, 1)
    pf.stamp(12)
    a(f"""
    s_and_b32 s17, s{sWave}, 7
    s_mul_i32 s17, s17, 3072
    v_add_u32 v{T0}, s17, v{VL16}
    s_barrier
    s_cmp_eq_u32 s{sKS}, 0
    s_cbranch_scc1 {name}_fin
    ds_write_b128 v{T0}, {vr(O,4)}
    ds_write_b128 v{T0}, {vr(O+4,4)} offset:1024
    ds_write_b128 v{T0}, {vr(O+8,4)} offset:2048
    s_waitcnt lgkmcnt(0)
    s_barrier
    s_branch {name}_done
    """)
    a.label(f"{name}_fin")
    a(f"""
    s_barrier
    ds_read_b128 {vr(8,4)}, v{T0}
    ds_read_b128 {vr(12,4)}, v{T0} offset:1024
    ds_read_b128 {vr(16,4)}, v{T0} offset:2048
    s_lshr_b32 s17, s{sHead}, 1
    s_lshl_b32 s17, s17, 10
    s_and_b32 s18, s{sHead}, 1
    s_lshl_b32 s18, s18, 9
    s_add_u32 s17, s17, s18
    s_mul_i32 s18, s{sTq}, {2*18432}
    s_add_u32 s18, s18, {OF}
    s_add_u32 s17, s17, s18
    v_bfe_u32 v{T1}, v{LANE}, 4, 1
    v_mul_u32_u24 v{T1}, 18432, v{T1}
    v_and_b32 v{T2}, 15, v{LANE}
    v_lshl_add_u32 v{T1}, v{T2}, 4, v{T1}
    v_lshrrev_b32 v{T2}, 5, v{LANE}
    v_lshl_add_u32 v{T2}, v{T2}, 8, v{T1}
    s_lshr_b32 s19, s{sHead}, 2
    s_lshl_b32 s19, s19, 8
    s_and_b32 s20, s{sHead}, 3
    s_lshl_b32 s20, s20, 2
    s_add_u32 s19, s19, s20
    s_add_u32 s19, s19, 16384
    s_add_u32 s19, s19, s18
    s_waitcnt lgkmcnt(0)
    """)
    for i in range(11): a(f"v_add_f32 v{O+i}, v{O+i}, v{8+i}")
    a(f"""
    v_mov_b32 v{T3}, v{O+10}
    v_permlane32_swap_b32 v{O+10}, v{T3}
    v_rcp_f32 v{T3}, v{O+10}
    """)
    for i in range(10): a(f"v_mul_f32 v{O+i}, v{O+i}, v{T3}")
    for i in range(5): a(f"v_cvt_pk_bf16_f32 v{P+i}, v{O+2*i}, v{O+2*i+1}")
    a(f"""
    buffer_store_dwordx4 {vr(P,4)}, v{T2}, s[{sWS}:{sWS+3}], s17 offen
    s_mov_b32 exec_hi, 0
    buffer_store_dword v{P+4}, v{T1}, s[{sWS}:{sWS+3}], s19 offen
    """)
    a.label(f"{name}_done")
    pf.stamp(13)
    pf.dump(sWS, sWave, 8)
    a.label(f"{name}_end")
    a("s_endpgm")
    return dict(name=name, grid=256, block=1024, lds=K2_LDS, vgpr=128, accum=128, sgpr=100 if Prof.enabled else 48)
```
